```python
import torch

def _softmax(x, axis=-1):
    return torch.softmax(x, dim=axis)
def _gelu(x):
    return torch.nn.functional.gelu(x, approximate="tanh")
def _silu(x):
    return torch.nn.functional.silu(x)
def _sigmoid(x):
    return torch.sigmoid(x)
def _layernorm(x, axis=-1, eps=1e-5):
    m = x.mean(dim=axis, keepdim=True)
    v = x.var(dim=axis, keepdim=True, unbiased=False)
    return (x - m) / torch.sqrt(v + eps)
def _scatter_add(tgt, idx, src, axis=0):
    return tgt.clone().index_add_(axis, idx, src)
def _segment_sum(src, seg, n):
    out = torch.zeros((n,) + src.shape[1:], dtype=src.dtype)
    return out.index_add_(0, seg, src)
def _pad(x, pw):
    flat = tuple(v for pair in reversed(pw) for v in pair)
    return torch.nn.functional.pad(x, flat)

kernel_name = 'standalone__mha_block_cached__near_ridge'

def setup_inputs():

    _w = (lambda a: (lambda t: t.to(torch.bfloat16) if t.is_floating_point() else t)(torch.as_tensor(a)))
    B, Sq, D = 8, 240, 640
    H, Sk, Dh = 32, 1024, 128
    return {
        "x": _w((lambda *s: torch.randn(*s, dtype=torch.bfloat16) * 0.8)(B, Sq, D)),
        "k_cache": _w((lambda *s: torch.randn(*s, dtype=torch.bfloat16) * 0.8)(B, H, Sk, Dh)),
        "v_cache": _w((lambda *s: torch.randn(*s, dtype=torch.bfloat16) * 0.05)(B, H, Sk, Dh)),
        "wq": _w((lambda *s: torch.randn(*s, dtype=torch.bfloat16) * 0.8)(D, H * Dh) * (D ** -0.5)),
        "wo": _w((lambda *s: torch.randn(*s, dtype=torch.bfloat16) * 0.05)(H * Dh, D) * ((H * Dh) ** -0.5)),
    }

def reference(x, k_cache, v_cache, wq, wo):
    B, Sq, D = x.shape
    H, Dh = 32, 128
    q = (lambda x, *d: x.permute(*d))((x @ wq).reshape(B, Sq, H, Dh), 0, 2, 1, 3)
    scores = torch.einsum("bhqd,bhkd->bhqk", q, k_cache) * (Dh ** -0.5)
    p = _softmax(scores, axis=-1)
    o = torch.einsum("bhqk,bhkd->bhqd", p, v_cache)
    return (lambda x, *d: x.permute(*d))(o, 0, 2, 1, 3).reshape(B, Sq, H * Dh) @ wo
```

```python
import collections


class R:
    def __init__(self, f, n, c=1):
        self.f, self.n, self.c = f, n, c

    def __str__(self):
        if self.f in ("vcc", "exec", "m0", "scc"):
            return self.f
        if self.c == 1:
            return f"{self.f}{self.n}"
        return f"{self.f}[{self.n}:{self.n + self.c - 1}]"

    def regs(self):
        if self.f in ("vcc", "exec", "m0", "scc"):
            return [self.f]
        return [f"{self.f}{i}" for i in range(self.n, self.n + self.c)]

    def __getitem__(self, k):
        if isinstance(k, slice):
            a = k.start or 0
            b = self.c if k.stop is None else k.stop
            assert 0 <= a < b <= self.c, (k, self.c)
            return R(self.f, self.n + a, b - a)
        assert 0 <= k < self.c, (k, self.c)
        return R(self.f, self.n + k, 1)

    def sub(self, a, c):
        return self[a:a + c]


def V(n, c=1): return R("v", n, c)
def A(n, c=1): return R("a", n, c)
def S(n, c=1): return R("s", n, c)
VCC = R("vcc", 0); EXEC = R("exec", 0); M0 = R("m0", 0); SCC = R("scc", 0)


def regs_of(*xs):
    out = []
    for x in xs:
        if isinstance(x, R):
            out += x.regs()
        elif isinstance(x, (list, tuple)):
            out += regs_of(*x)
    return out


def lit(x):
    if isinstance(x, R):
        return str(x)
    if isinstance(x, float):
        import struct
        if x in (0.5, -0.5, 1.0, -1.0, 2.0, -2.0, 4.0, -4.0):
            return repr(x)
        if x == 0.0:
            return "0"
        return "0x%08x" % struct.unpack("<I", struct.pack("<f", x))[0]
    if isinstance(x, int):
        if -16 <= x <= 64:
            return str(x)
        return "0x%x" % (x & 0xffffffff)
    return str(x)


class I:
    __slots__ = ("text", "kind", "reads", "writes", "key", "m", "pre_vm", "pre_lgkm", "pre_nop", "t")

    def __init__(self, text, kind, reads=(), writes=(), **m):
        self.text, self.kind = text, kind
        self.reads, self.writes = regs_of(reads), regs_of(writes)
        self.m = m
        self.key = None
        self.pre_vm = self.pre_lgkm = None
        self.pre_nop = 0
        self.t = 0


TRANS = ("v_exp_f32", "v_log_f32", "v_rcp_f32", "v_rsq_f32", "v_sqrt_f32")


def valu(op, d, *src, mods=""):
    kind = "trans" if op in TRANS else "valu"
    rd = [s for s in src if isinstance(s, R)]
    wr = [d]
    m = {}
    if op.startswith("v_fmac") or op.startswith("v_dot2c"):
        rd.append(d)
    if op.startswith("v_cndmask") and len(src) == 2:
        rd.append(VCC)
        src = src + (VCC,)
    if op.startswith("v_readfirstlane") or op.startswith("v_readlane"):
        m["lane_read"] = True
    if op.startswith("v_permlane"):
        rd = [d] + rd
        wr = [d] + [s for s in src if isinstance(s, R)]
        m["perm"] = True
    txt = f"{op} {d}, " + ", ".join(lit(s) for s in src) + (" " + mods if mods else "")
    return I(txt, kind, rd, wr, **m)


def vneg(op, d, *src, negs=()):
    rd = [s for s in src if isinstance(s, R)]
    txt = f"{op} {d}, " + ", ".join(("-" if i in negs else "") + lit(s) for i, s in enumerate(src))
    return I(txt, "trans" if op.split("_e64")[0] in TRANS else "valu", rd, [d])


def vcmp(op, a, b, dst=VCC):
    return I(f"{op} {dst}, {lit(a)}, {lit(b)}", "valu", [x for x in (a, b) if isinstance(x, R)], [dst])


def salu(op, d, *src):
    rd = [s for s in src if isinstance(s, R)]
    wr = [d]
    if op not in ("s_mov_b32", "s_mov_b64", "s_mul_i32", "s_mul_hi_u32", "s_cselect_b32", "s_getreg_b32", "s_movk_i32"):
        wr.append(SCC)
    if op in ("s_addc_u32", "s_cselect_b32", "s_subb_u32"):
        rd.append(SCC)
    if "saveexec" in op:
        rd.append(EXEC); wr.append(EXEC)
    return I(f"{op} {d}, " + ", ".join(lit(s) for s in src), "salu", rd, wr)


def scmp(op, a, b):
    return I(f"{op} {lit(a)}, {lit(b)}", "salu", [x for x in (a, b) if isinstance(x, R)], [SCC])


def mfma(d, a, b, c, shape="32x32x16"):
    passes = 8 if shape == "32x32x16" else 4
    rd = [a, b] + ([c] if isinstance(c, R) else [])
    return I(f"v_mfma_f32_{shape}_bf16 {d}, {a}, {b}, {lit(c)}", "mfma", rd, [d], passes=passes,
             d=d.regs(), ab=regs_of(a, b), c=regs_of(c), shape=shape)


def ds_read(op, d, addr, off, region=None, expect=None):
    assert 0 <= off < 65536, off
    return I(f"{op} {d}, {addr}" + (f" offset:{off}" if off else ""), "ds_read", [addr], [d], region=region, expect=expect)


def ds_write(op, addr, data, off, region=None, tag=None):
    assert 0 <= off < 65536, off
    return I(f"{op} {addr}, {data}" + (f" offset:{off}" if off else ""), "ds_write", [addr, data], [], region=region, tag=tag)


def buf_load(d, voff, srd, soff, off=0, flags="", width=4, tag=None):
    assert 0 <= off < 4096
    op = {1: "buffer_load_dword", 2: "buffer_load_dwordx2", 4: "buffer_load_dwordx4"}[width]
    return I(f"{op} {d}, {voff}, {srd}, {lit(soff)} offen" + (f" offset:{off}" if off else "") + (" " + flags if flags else ""),
             "vm_load", [voff, srd, soff], [d], tag=tag)


def dma(voff, srd, soff, off=0, flags="", region=None, tag=None):
    assert 0 <= off < 4096
    return I(f"buffer_load_dwordx4 {voff}, {srd}, {lit(soff)} offen" + (f" offset:{off}" if off else "") + (" " + flags if flags else "") + " lds",
             "dma", [voff, srd, soff, M0], [], region=region, tag=tag)


def buf_store(data, voff, srd, soff, off=0, flags="", tag=None):
    assert 0 <= off < 4096
    op = {1: "buffer_store_dword", 2: "buffer_store_dwordx2", 4: "buffer_store_dwordx4"}[data.c]
    return I(f"{op} {data}, {voff}, {srd}, {lit(soff)} offen" + (f" offset:{off}" if off else "") + (" " + flags if flags else ""),
             "vm_store", [data, voff, srd, soff], [], wide=data.c >= 3, data=data.regs(), tag=tag)


def smem(op, d, base, off):
    rd = [base] if base is not None else []
    txt = f"{op} {d}" + (f", {base}, {lit(off)}" if base is not None else "")
    return I(txt, "smem", rd, [d])


def wait(vm=None, lgkm=None):
    return I("", "wait", vm=vm, lgkm=lgkm)


def wait_tags(*tags, lgkm=None):
    return I("", "wait", tags=tags, vm=None, lgkm=lgkm)


def barrier():
    return I("s_barrier", "barrier")


def nop(n=0):
    return I(f"s_nop {n}", "nop", n=n)


def raw(text, kind="salu", reads=(), writes=(), **m):
    return I(text, kind, reads, writes, **m)


def label(name):
    return I(name + ":", "label")


def branch(op, target):
    rd = [SCC] if "scc" in op else ([VCC] if "vcc" in op else ([EXEC] if "exec" in op else []))
    return I(f"{op} {target}", "branch", rd, [])


def comment(s):
    return I("; " + s, "label")


class Prog:
    def __init__(self, ds_lat=160, verbose=True):
        self.trace = []
        self.loop = None
        self.ds_lat = ds_lat
        self.verbose = verbose
        self.merged = {}

    def add(self, *ins):
        for x in ins:
            if x is None:
                continue
            if isinstance(x, (list, tuple)):
                self.add(*x)
                continue
            if self.loop is not None:
                x.key = (self.loop[0], self.loop[2])
                x.m["trip"] = self.loop[1]
                self.loop[2] += 1
            self.trace.append(x)

    def loop_begin(self, name, trip):
        assert self.loop is None
        self.loop = [name, trip, 0]

    def loop_end(self):
        self.loop = None

    def _shared(self, x):
        if x.key is None:
            return x
        return self.merged.setdefault(x.key, x)

    def _times(self):
        t = 0
        mf_end = 0
        for x in self.trace:
            if x.kind == "label":
                x.t = t
                continue
            if x.kind == "mfma":
                t = max(t, mf_end)
                x.t = t
                mf_end = t + 4 * x.m["passes"]
                t += 8
            else:
                x.t = t
                t += 8 if x.kind == "trans" else 4
        return t

    def insert_waits(self):
        self._times()
        for _ in range(4):
            changed = self._wait_pass()
            if not changed:
                break
        else:
            raise RuntimeError("waits did not converge")

    def _wait_pass(self):
        vm = []
        lg = []
        pend = {}
        changed = False

        def retire(lst, n):
            while len(lst) > n:
                o = lst.pop(0)
                for r in o.writes:
                    if pend.get(r) is o:
                        del pend[r]

        for x in self.trace:
            sh = self._shared(x)
            need_vm = need_lg = None
            if x.kind == "wait":
                if x.m.get("tags") is not None:
                    idx = [i for i, o in enumerate(vm) if o.m.get("tag") in x.m["tags"]]
                    if idx:
                        need_vm = len(vm) - 1 - max(idx)
                if x.m.get("vm") is not None:
                    need_vm = x.m["vm"] if need_vm is None else min(need_vm, x.m["vm"])
                need_lg = x.m.get("lgkm")
            else:
                for r in x.reads + x.writes:
                    o = pend.get(r)
                    if o is None:
                        continue
                    if o.kind == "vm_load":
                        n = len(vm) - 1 - vm.index(o)
                        need_vm = n if need_vm is None else min(need_vm, n)
                    elif o.kind == "smem":
                        need_lg = 0
                    else:
                        if any(q.kind == "smem" for q in lg):
                            n = 0
                        else:
                            n = len(lg) - 1 - lg.index(o)
                            young = sum(1 for q in lg if x.t - q.t < self.ds_lat)
                            n = min(n, young)
                        need_lg = n if need_lg is None else min(need_lg, n)
            if need_vm is not None:
                need_vm = min(need_vm, 63)
                if sh.pre_vm is None or need_vm < sh.pre_vm:
                    sh.pre_vm = need_vm; changed = True
            if need_lg is not None:
                need_lg = min(need_lg, 15)
                if sh.pre_lgkm is None or need_lg < sh.pre_lgkm:
                    sh.pre_lgkm = need_lg; changed = True
            if sh.pre_vm is not None:
                retire(vm, sh.pre_vm)
            if sh.pre_lgkm is not None:
                if sh.pre_lgkm > 0:
                    assert not any(q.kind == "smem" for q in lg), "counted lgkm wait with smem outstanding: " + x.text
                retire(lg, sh.pre_lgkm)
            if x.kind in ("vm_load", "dma", "vm_store"):
                vm.append(x)
                assert len(vm) <= 63, "vmcnt overflow at " + x.text
            if x.kind in ("ds_read", "ds_write", "smem"):
                lg.append(x)
            if x.kind in ("vm_load", "ds_read", "smem"):
                for r in x.writes:
                    pend[r] = x
        return changed

    def _has_wait(self, x):
        sh = self._shared(x)
        return sh.pre_vm is not None or sh.pre_lgkm is not None

    def insert_nops(self):
        for _ in range(6):
            if not self._nop_pass():
                return
        raise RuntimeError("nops did not converge")

    def _nop_pass(self):
        changed = False
        hist = []
        pos = 0
        for x in self.trace:
            if x.kind == "label":
                continue
            sh = self._shared(x)
            base = pos + (1 if self._has_wait(x) else 0)
            if x.kind == "wait":
                pos = base
                continue
            need = 0
            rd, wr = set(x.reads), set(x.writes)
            isv = x.kind in ("valu", "trans")
            for (p, o) in reversed(hist):
                dist = base - p - 1
                if dist >= 20:
                    break
                req = 0
                ow = set(o.writes)
                if o.kind in ("valu", "trans"):
                    if x.kind == "mfma" and ow & rd:
                        req = max(req, 4 if "exec" in ow else 2)
                    if x.kind == "mfma" and "exec" in ow:
                        req = max(req, 4)
                    if o.kind == "trans" and isv and ow & rd:
                        req = max(req, 1)
                    sw = {r for r in ow if r[0] == "s" or r == "vcc"}
                    if sw & rd:
                        if x.kind in ("vm_load", "vm_store", "dma"):
                            req = max(req, 5)
                        elif isv:
                            req = max(req, 4 if x.m.get("lane_read") else 2)
                        elif x.kind == "branch":
                            req = max(req, 4)
                        elif x.kind == "salu":
                            req = max(req, 1)
                    if x.m.get("lane_read") and ow & rd:
                        req = max(req, 1)
                    if x.m.get("perm") and ow & rd:
                        req = max(req, 2)
                elif o.kind == "mfma":
                    P = o.m["passes"]
                    od = set(o.m["d"])
                    if x.kind == "mfma":
                        if od & set(x.m["ab"]):
                            req = max(req, P + 4)
                        if od & set(x.m["c"]):
                            if not (o.m["d"] == x.m["c"] and o.m["shape"] == x.m["shape"]):
                                req = max(req, P + 2)
                        elif od & set(x.m["d"]):
                            req = max(req, P + 2)
                    else:
                        if od & (rd | wr):
                            req = max(req, P + 4)
                        if isv and set(o.m["c"]) & wr:
                            req = max(req, P - 1)
                        if x.kind in ("ds_read", "vm_load") and set(o.m["ab"]) & wr:
                            req = max(req, 1)
                elif o.kind == "salu":
                    if "m0" in ow and x.kind == "dma":
                        req = max(req, 1)
                elif o.kind == "vm_store" and o.m.get("wide"):
                    if set(o.m["data"]) & wr:
                        req = max(req, 2)
                elif o.kind == "ds_write":
                    pass
                need = max(need, req - dist)
            if need > sh.pre_nop:
                sh.pre_nop = need
                changed = True
            pos = base + sh.pre_nop
            hist.append((pos, x))
            if len(hist) > 40:
                hist.pop(0)
            pos += (x.m["n"] + 1) if x.kind == "nop" else 1
        return changed

    def check_lds(self):
        vm, lg = [], []
        content = {}
        readers = collections.defaultdict(list)
        errs = []
        for x in self.trace:
            sh = self._shared(x)
            if sh.pre_vm is not None:
                while len(vm) > sh.pre_vm:
                    o = vm.pop(0)
                    o.m["_done"] = True
            if sh.pre_lgkm is not None:
                while len(lg) > sh.pre_lgkm:
                    o = lg.pop(0)
                    o.m["_done"] = True
            if x.kind == "barrier":
                for reg, ops in content.items():
                    for o in ops:
                        if o.m.get("_done"):
                            o.m["_pub"] = True
                for reg, ops in readers.items():
                    for o in ops:
                        if o.m.get("_done"):
                            o.m["_fenced"] = True
            if x.kind in ("dma", "ds_write") and x.m.get("region") is not None:
                reg = x.m["region"]
                shared = reg[-1]
                for o in readers.get(reg, []):
                    if o.m["expect"] == x.m["tag"]:
                        continue
                    if shared and not o.m.get("_fenced"):
                        errs.append(f"WAR: {x.text} [{reg} tag {x.m['tag']}] overwrites data of unfenced read {o.text} expect {o.m['expect']}")
                        break
                    if not shared and x.kind == "dma" and not o.m.get("_done"):
                        errs.append(f"WAR(private): {x.text} [{reg}] vs {o.text}")
                        break
                old = content.get(reg, [])
                if old and old[0].m["tag"] != x.m["tag"]:
                    content[reg] = []
                    readers[reg] = []
                content.setdefault(reg, []).append(x)
            if x.kind == "ds_read" and x.m.get("region") is not None:
                reg = x.m["region"]
                shared = reg[-1]
                ops = content.get(reg, [])
                if not ops or ops[0].m["tag"] != x.m["expect"]:
                    errs.append(f"RAW: {x.text} [{reg}] expects {x.m['expect']} finds {ops[0].m['tag'] if ops else None}")
                else:
                    for o in ops:
                        if shared:
                            ok = o.m.get("_pub")
                        else:
                            ok = o.m.get("_done") or o.kind == "ds_write"
                        if not ok:
                            errs.append(f"RAW: {x.text} [{reg}] tag {x.m['expect']} not yet visible ({o.text})")
                            break
                readers[reg].append(x)
            if x.kind in ("vm_load", "dma", "vm_store"):
                vm.append(x)
            if x.kind in ("ds_read", "ds_write", "smem"):
                lg.append(x)
        for e in errs[:20]:
            print("LDS-CHECK", e)
        assert not errs, f"{len(errs)} LDS protocol errors"

    def finish(self):
        self.insert_waits()
        self.insert_nops()
        if not getattr(self, 'nocheck', False):
            self.check_lds()
        out = []
        seen = {}
        stats = collections.Counter()
        for x in self.trace:
            sh = self._shared(x)
            if x.key is not None:
                if x.key in seen:
                    assert seen[x.key] == x.text, f"loop trips differ: {seen[x.key]!r} vs {x.text!r}"
                    continue
                seen[x.key] = x.text
            w = []
            if sh.pre_vm is not None:
                w.append(f"vmcnt({sh.pre_vm})")
            if sh.pre_lgkm is not None:
                w.append(f"lgkmcnt({sh.pre_lgkm})")
            if w:
                out.append("s_waitcnt " + " ".join(w)); stats["wait"] += 1
            n = sh.pre_nop
            while n > 0:
                k = min(n, 16)
                out.append(f"s_nop {k - 1}"); stats["nop"] += 1
                n -= k
            if x.text:
                out.append(x.text)
                stats[x.kind] += 1
        if self.verbose:
            print("static:", dict(stats), "est cycles:", self._times())
        return "\n".join(("" if l.endswith(":") or l.startswith(";") else "    ") + l for l in out) + "\n"


def slots_emit(P, slots):
    for m, f in slots:
        P.add(m)
        P.add(f)
```

```python
import sys, math
sys.path.insert(0, "dev")
from asmdsl import *

KNAME = "standalone__mha_block_cached__near_ridge_kernel"
CSCALE = math.log2(math.e) / math.sqrt(128.0)
L_LIMIT = float(2 ** 24)

KB, VB, EB = 0, 65536, 131072
WB = VB + 3 * 16384
XT = 3 * 16384
FLAG = 0


class Cfg:
    stamps = False
    kv_in_p1 = True
    o_flags = ""
    kv_flags = "nt"


sX, sW, sK, sV, sO = S(4, 4), S(8, 4), S(12, 4), S(16, 4), S(20, 4)
sWO, sOUT, sDBG = S(24, 4), S(28, 4), S(32, 4)
sARG = S(36, 16)
sWAVE, sW4K, sB, sH = S(52), S(53), S(54), S(55)
sXROW = S(56, 8)
sKV, sWOFF, sCNT, sT0, sT1, sT2, sSEC, sQ1 = S(64), S(65), S(66), S(67), S(68), S(69), S(70), S(71)
sEX = S(72, 2)
sSTAMP = S(76, 24)

vTID = V(0)
vT = V(1, 7)
vKRD = V(8, 8)
vVRD = V(16, 4)
vKDMA = V(20, 4)
vVDMA = V(24)
vOST = V(25)
vL = V(26, 2)
vM = V(28, 2)
vWRD = V(30, 4)
vWDMA = V(34, 4)
vXLD = V(38)
vXWR = V(40, 2)
vXRD = V(42, 4)
vS = [V(48, 16), V(64, 16)]
vP = [V(80, 8), V(88, 8)]
vNM = [V(96, 16), V(112, 16)]
vACC = [[V(128 + 64 * qb + 16 * db, 16) for db in range(4)] for qb in range(2)]
aWF = [A(4 * i, 4) for i in range(16)]
aXF = [[A(64 + 16 * qb + 4 * s, 4) for s in range(4)] for qb in range(2)]
aXS = [[A(96 + 16 * u + 4 * i, 4) for i in range(4)] for u in range(6)]
aKF = [A(96 + 4 * i, 4) for i in range(8)]
aVF = [A(128 + 4 * i, 4) for i in range(8)]
aQ = [[A(192 + 32 * qb + 4 * s, 4) for s in range(8)] for qb in range(2)]


nstamp = [0]


def stamp(P, cfg):
    if not cfg.stamps:
        return
    i = nstamp[0]; nstamp[0] += 1
    op = "s_memrealtime" if cfg.stamps == 2 else "s_memtime"
    P.add(raw(f"{op} {sSTAMP.sub(2 * i, 2)}", "salu"))


def srd(P, s, base_lo, base_hi, off, size):
    P.add(salu("s_add_u32", s[0], base_lo, off), salu("s_addc_u32", s[1], base_hi, 0),
          salu("s_mov_b32", s[2], size), salu("s_mov_b32", s[3], 0x20000))


def entry(P, nwg, label_exit):
    P.add(scmp("s_cmp_ge_u32", S(2), nwg), branch("s_cbranch_scc1", label_exit))
    P.add(smem("s_load_dwordx8", sARG.sub(0, 8), S(0, 2), 0), smem("s_load_dwordx8", sARG.sub(8, 8), S(0, 2), 32))
    P.add(raw(f"s_getpc_b64 {sEX}", "salu", [], [sEX]))
    P.add(valu("v_lshlrev_b32", vT[0], 7, vTID))
    P.add(I(f"global_load_dword {vT[1]}, {vT[0]}, {sEX}", "vm_load", [vT[0], sEX], [vT[1]], tag="code"))
    P.add(valu("v_lshrrev_b32", vT[2], 6, vTID))
    P.add(valu("v_and_b32", vTID, 63, vTID))
    P.add(valu("v_readfirstlane_b32", sWAVE, vT[2]))


def setup_A(P):
    l = vTID
    t0, t1, t2, t3, t4, t5 = [vT[i] for i in range(1, 7)]
    t0 = vT[2]; t1 = vT[3]; t2 = vT[4]; t3 = vT[5]; t4 = vT[6]
    P.add(salu("s_and_b32", sT0, S(2), 7), salu("s_lshr_b32", sT1, S(2), 3))
    P.add(salu("s_and_b32", sB, sT0, 1), salu("s_lshl_b32", sB, sB, 2), salu("s_and_b32", sT2, sT1, 3), salu("s_add_u32", sB, sB, sT2))
    P.add(salu("s_lshr_b32", sH, sT0, 1), salu("s_lshl_b32", sH, sH, 3), salu("s_lshr_b32", sT2, sT1, 2), salu("s_add_u32", sH, sH, sT2))
    P.add(salu("s_lshl_b32", sW4K, sWAVE, 12))
    for i in range(8):
        P.add(salu("s_mov_b32", sXROW[i], i * 10240))
    P.add(valu("v_lshrrev_b32", t0, 4, l), valu("v_lshlrev_b32", t1, 2, t0), valu("v_and_b32", t2, 15, l), valu("v_xor_b32", t1, t1, t2),
          valu("v_lshlrev_b32", t1, 4, t1))
    P.add(salu("s_lshl_b32", sT2, sWAVE, 17))
    P.add(valu("v_lshl_add_u32", t3, t0, 13, t1), valu("v_add_u32", vWDMA[0], sT2, t3))
    for i in range(1, 4):
        P.add(valu("v_add_u32", vWDMA[i], i * (32768 - 1024), vWDMA[0]))
    P.add(valu("v_lshl_add_u32", t3, t0, 8, t1), valu("v_add_u32", vVDMA, sW4K, t3))
    P.add(salu("s_mul_i32", sT2, sWAVE, 64 * 1280))
    P.add(valu("v_lshrrev_b32", t3, 3, l), valu("v_mul_u32_u24", t4, 1280, t3), valu("v_and_b32", t1, 7, l),
          valu("v_lshl_add_u32", t4, t1, 4, t4), valu("v_add_u32", vXLD, sT2, t4))
    P.add(salu("s_mul_i32", sT0, sB, 307200))
    srd(P, sX, sARG[0], sARG[1], sT0, 307200)
    P.add(salu("s_lshl_b32", sT0, sH, 8), salu("s_sub_u32", sT1, 5242880, sT0))
    srd(P, sW, sARG[6], sARG[7], sT0, sT1)


def setup_A2(P):
    l = vTID
    t0 = vT[2]; t1 = vT[3]; t2 = vT[4]; t3 = vT[5]; t4 = vT[6]
    P.add(salu("s_lshl_b32", sT0, sB, 5), salu("s_add_u32", sT0, sT0, sH), salu("s_lshl_b32", sT0, sT0, 18))
    srd(P, sK, sARG[2], sARG[3], sT0, 262144)
    srd(P, sV, sARG[4], sARG[5], sT0, 262144)
    P.add(salu("s_mul_i32", sT0, sB, 15 * 32), salu("s_add_u32", sT0, sT0, sH), salu("s_lshl_b32", sT0, sT0, 12))
    srd(P, sO, sARG[14], sARG[15], sT0, 14 * 131072 + 4096)
    P.add(salu("s_mov_b32", sQ1, 262144), salu("s_mov_b32", sSEC, 0))
    P.add(valu("v_lshrrev_b32", t0, 4, l), valu("v_and_b32", t2, 15, l), valu("v_xor_b32", t1, t0, t2),
          valu("v_lshlrev_b32", t3, 8, t0), valu("v_add_u32", t3, sW4K, t3))
    for i in range(4):
        P.add(valu("v_xor_b32", t4, 4 * i, t1), valu("v_lshl_add_u32", vKDMA[i], t4, 4, t3))
    P.add(valu("v_lshrrev_b32", t3, 3, l), valu("v_lshlrev_b32", t3, 7, t3), valu("v_add_u32", t3, sW4K, t3), valu("v_add_u32", t3, XT, t3),
          valu("v_and_b32", t1, 7, l), valu("v_xor_b32", t1, t1, t0))
    for p in range(2):
        P.add(valu("v_xor_b32", t4, 4 * p, t1), valu("v_lshl_add_u32", vXWR[p], t4, 4, t3))
    P.add(valu("v_and_b32", t0, 31, l), valu("v_lshrrev_b32", t1, 5, l), valu("v_bfe_u32", t2, l, 1, 3), valu("v_xor_b32", t2, t2, t1),
          valu("v_lshlrev_b32", t3, 7, t0), valu("v_add_u32", t3, sW4K, t3), valu("v_add_u32", t3, XT, t3))
    for s in range(4):
        P.add(valu("v_xor_b32", t4, 2 * s, t2), valu("v_lshl_add_u32", vXRD[s], t4, 4, t3))
    P.add(valu("v_and_b32", t2, 15, l), valu("v_xor_b32", t2, t2, t1), valu("v_lshlrev_b32", t3, 8, t0))
    for s in range(8):
        P.add(valu("v_xor_b32", t4, 2 * s, t2), valu("v_lshl_add_u32", vKRD[s], t4, 4, t3))
    P.add(valu("v_bfe_u32", t2, l, 4, 1), valu("v_lshlrev_b32", t2, 17, t2), valu("v_and_b32", t3, 15, l), valu("v_lshl_add_u32", t3, t1, 4, t3),
          valu("v_lshl_add_u32", t2, t3, 4, t2), salu("s_lshl_b32", sT0, sWAVE, 19), valu("v_add_u32", vOST, sT0, t2))
    P.add(valu("v_bfe_u32", t0, l, 2, 2))
    P.add(valu("v_bfe_u32", t2, l, 4, 1), valu("v_lshlrev_b32", t2, 5, t2),
          valu("v_and_b32", t3, 1, l), valu("v_lshl_add_u32", t2, t3, 4, t2),
          valu("v_bfe_u32", t3, l, 1, 1), valu("v_lshl_add_u32", t2, t3, 3, t2),
          valu("v_lshl_add_u32", t2, t0, 8, t2))
    P.add(valu("v_lshl_add_u32", t3, t1, 10, t2), valu("v_add_u32", t3, VB, t3))
    P.add(valu("v_lshl_add_u32", t2, t1, 11, t2), valu("v_add_u32", t2, WB, t2))
    for db in range(4):
        P.add(valu("v_xor_b32", t4, db, t0), valu("v_lshl_add_u32", vVRD[db], t4, 6, t3), valu("v_lshl_add_u32", vWRD[db], t4, 6, t2))


def wslot(t): return (t + 2) % 3
def wregion(t): return ("V3", True) if wslot(t) == 0 else (f"E{wslot(t) - 1}", True)


def w_dma(t):
    out = [salu("s_add_u32", M0, sW4K, WB + wslot(t) * 16384), salu("s_mov_b32", sWOFF, t * 524288)]
    for i in range(4):
        out.append(dma(vWDMA[i], sW, sWOFF, 1024 * i, region=wregion(t), tag=("W", t)))
    return out


def x_load(n):
    t, qb = divmod(n, 2)
    return [buf_load(aXS[n % 6][i], vXLD, sX, sXROW[4 * qb + i], 128 * t, tag=("X", n)) for i in range(4)]


def x_write(n):
    return [ds_write("ds_write_b128", vXWR[i & 1], aXS[n % 6][i], 1024 * i, region=("K3", False), tag=("X", n)) for i in range(4)]


def x_read(n):
    qb = n & 1
    return [ds_read("ds_read_b128", aXF[qb][s], vXRD[s], 0, region=("K3", False), expect=("X", n)) for s in range(4)]


def w_read(t):
    out = []
    for i in range(16):
        s, db = divmod(i, 4)
        for h in range(2):
            out.append(ds_read("ds_read_b64_tr_b16", aWF[i].sub(2 * h, 2), vWRD[db], wslot(t) * 16384 + s * 4096 + h * 1024,
                               region=wregion(t), expect=("W", t)))
    return out


def k_dma(cfg, T, soff=None):
    out = [salu("s_add_u32", M0, sW4K, KB + (T & 3) * 16384)]
    if soff is None:
        out.append(salu("s_mov_b32", sKV, T * 16384))
    for i in range(4):
        out.append(dma(vKDMA[i], sK, sKV, 1024 * i, cfg.kv_flags, region=(f"K{T & 3}", True), tag=("K", T)))
    return out


def v_dma(cfg, T, soff=None):
    out = [salu("s_add_u32", M0, sW4K, VB + (T & 3) * 16384)]
    if soff is None:
        out.append(salu("s_mov_b32", sKV, T * 16384))
    for i in range(4):
        out.append(dma(vVDMA, sV, sKV, 1024 * i, cfg.kv_flags, region=(f"V{T & 3}", True), tag=("V", T)))
    return out


def k_read(j):
    T, half = divmod(j, 2)
    return [ds_read("ds_read_b128", aKF[s], vKRD[s], (T & 3) * 16384 + half * 8192, region=(f"K{T & 3}", True), expect=("K", T)) for s in range(8)]


def v_read(j):
    T, half = divmod(j, 2)
    out = []
    for i in range(8):
        ks, db = divmod(i, 4)
        for h in range(2):
            out.append(ds_read("ds_read_b64_tr_b16", aVF[i].sub(2 * h, 2), vVRD[db], (T & 3) * 16384 + half * 8192 + ks * 4096 + h * 2048,
                               region=(f"V{T & 3}", True), expect=("V", T)))
    return out


def q_convert(qb):
    out = []
    for db in range(4):
        acc = vACC[qb][db]
        for e in range(0, 16, 2):
            tmp = vT[(e // 2) % 4 + 1]
            out += [valu("v_mul_f32", acc[e], sT2, acc[e]), valu("v_mul_f32", acc[e + 1], sT2, acc[e + 1]),
                    valu("v_cvt_pk_bf16_f32", tmp, acc[e], acc[e + 1]),
                    valu("v_accvgpr_write_b32", aQ[qb][2 * db + e // 8][(e % 8) // 2], tmp)]
    return out


def phase1(P, cfg):
    P.add(w_dma(0), x_load(0), x_load(1))
    setup_A2(P)
    P.add(w_dma(1), x_load(2), x_load(3), w_dma(2), x_load(4), x_load(5))
    P.add(x_write(0), x_read(0))
    P.add(wait_tags(("W", 0)), barrier())
    stamp(P, cfg)
    wr = w_read(0)
    P.add(wr[:23])
    P.add(x_load(6))
    carry = [(32 + k, r) for k, r in enumerate(wr[23:31])] + [(40, wr[31])]
    kvq = []
    if cfg.kv_in_p1:
        groups = [k_dma(cfg, 0), v_dma(cfg, 0), k_dma(cfg, 1), v_dma(cfg, 1), k_dma(cfg, 2), v_dma(cfg, 2)]
        sched = {1: 0, 2: 1, 3: 2, 4: 3, 5: 4, 6: 5}
    else:
        groups = [k_dma(cfg, 0) + v_dma(cfg, 0), k_dma(cfg, 1) + v_dma(cfg, 1) + k_dma(cfg, 2) + v_dma(cfg, 2)]
        sched = {7: 0, 8: 1}
    NT = 10
    for t in range(NT):
        sl = [[None, []] for _ in range(32)]
        for qb in range(2):
            for i in range(16):
                s, db = divmod(i, 4)
                c = 0 if (t == 0 and s == 0) else vACC[qb][db]
                sl[16 * qb + i][0] = mfma(vACC[qb][db], aWF[i], aXF[qb][s], c)
        for k, w in enumerate(x_write(2 * t + 1)):
            sl[k][1].append(w)
        for k, r in enumerate(x_read(2 * t + 1)):
            sl[4 + k][1].append(r)
        for (pos, r) in carry:
            sl[pos - 32][1].append(r)
        carry = []
        if 2 * t + 1 + 6 < 2 * NT:
            for k, ld in enumerate(x_load(2 * t + 1 + 6)):
                sl[8 + k][1].append(ld)
        if t in sched:
            g = groups[sched[t]]
            pos = 12
            cnt = 0
            for ins in g:
                sl[min(pos, 15)][1].append(ins)
                if ins.kind == "dma":
                    cnt += 1
                    if cnt % max(1, (sum(1 for q in g if q.kind == "dma") // 4)) == 0:
                        pos += 1
        if t + 1 < NT:
            sl[16][1] += [wait_tags(("W", t + 1)), barrier()]
            for k, w in enumerate(x_write(2 * t + 2)):
                sl[16 + k][1].append(w)
            for k, r in enumerate(x_read(2 * t + 2)):
                sl[20 + k][1].append(r)
            wr = w_read(t + 1)
            cap = {p: (1 if (p <= 23 or 32 <= p <= 39) else 2) for p in range(17, 48)}
            p = 17
            for k, r in enumerate(wr):
                while cap[p] == 0 or p < 17 + k // 2:
                    p += 1
                cap[p] -= 1
                assert p <= 28 + k // 2
                if p < 32:
                    sl[p][1].append(r)
                else:
                    carry.append((p, r))
            if 2 * t + 2 + 6 < 2 * NT:
                for k, ld in enumerate(x_load(2 * t + 2 + 6)):
                    sl[24 + k][1].append(ld)
            g = None
            if t + 3 < NT:
                g = w_dma(t + 3)
            elif t == 7:
                g = v_dma(cfg, 3)
            if g:
                sl[27][1] += g[:2]
                for k, ins in enumerate(g[2:]):
                    sl[28 + k][1].append(ins)
        else:
            sl[16][1] += [wait_tags(("K", 0), ("V", 0)), barrier()]
            g = k_dma(cfg, 3)
            sl[17][1] += g[:2]
            for k, ins in enumerate(g[2:]):
                sl[18 + k][1].append(ins)
            for k, r in enumerate(k_read(0)):
                sl[22 + k][1].append(r)
            sl[15][1].append(salu("s_mov_b32", sT2, CSCALE))
            qc = q_convert(0)
            per = 4
            pos = 19
            while qc and pos < 32:
                sl[pos][1] += qc[:per]
                qc = qc[per:]
                pos += 1
            rest0 = qc
        slots_emit(P, sl)
    P.add(rest0)
    stamp(P, cfg)


def sm_ops(qb, e):
    s = vS[qb]
    out = []
    if e < 16:
        out.append(valu("v_exp_f32", s[e], s[e]))
    if e >= 1:
        out.append(valu("v_add_f32", vL[qb], vL[qb], s[e - 1]))
        if (e - 1) & 1:
            out.append(valu("v_cvt_pk_bf16_f32", vP[qb][(e - 1) // 2], s[e - 2], s[e - 1]))
    return out


def qk(qb, s, c0):
    return mfma(vS[qb], aKF[s], aQ[qb][s], c0 if s == 0 else vS[qb])


def pv(qb, i, first=False):
    ks, db = divmod(i, 4)
    return mfma(vACC[qb][db], aVF[i], vP[qb].sub(4 * ks, 4), 0 if (first and ks == 0) else vACC[qb][db])


def rowmax(qb, dst, tmp):
    s = vS[qb]
    out = [valu("v_max3_f32", dst, s[0], s[1], s[2])]
    for e in range(3, 15, 2):
        out.append(valu("v_max3_f32", dst, dst, s[e], s[e + 1]))
    out.append(valu("v_max_f32", dst, dst, s[15]))
    out += [valu("v_mov_b32", tmp, dst), valu("v_permlane32_swap_b32", dst, tmp), valu("v_max_f32", dst, dst, tmp)]
    return out


V_POS = [9 + (2 * k) // 3 for k in range(16)]


def attn_iter(P, cfg, j, in_loop=False):
    T = j // 2
    sl = [[None, []] for _ in range(32)]
    for s in range(8):
        sl[s][0] = qk(0, s, vNM[0])
        sl[8 + s][0] = pv(1, s, first=(j == 1))
        sl[16 + s][0] = qk(1, s, vNM[1])
        sl[24 + s][0] = pv(0, s)
    for e in range(6, 17):
        sl[e - 6][1] += sm_ops(1, e)
    for e in range(17):
        sl[10 + e][1] += sm_ops(0, e)
    for e in range(6):
        sl[26 + e][1] += sm_ops(1, e)
    sl[0][1].append(k_read(j)[7])
    for k, r in enumerate(v_read(j)):
        sl[V_POS[k]][1].append(r)
    if j & 1:
        if T + 1 < 16:
            sl[24][1] += [wait_tags(("K", T + 1), ("V", T + 1), lgkm=0), barrier()]
    else:
        Tn = T + 3
        if Tn < 16:
            sl[0][1].append(salu("s_add_u32", sKV, sKV, 16384))
            g = k_dma(cfg, Tn, soff=True)
            sl[1][1].insert(0, g[0])
            for k in range(4):
                sl[1 + k][1].append(g[1 + k])
            g = v_dma(cfg, Tn, soff=True)
            sl[5][1].insert(0, g[0])
            for k in range(4):
                sl[5 + k][1].append(g[1 + k])
    if j + 1 < 32:
        for k, r in enumerate(k_read(j + 1)[:7]):
            sl[25 + k][1].append(r)
    slots_emit(P, sl)


def phase2(P, cfg):
    qc = q_convert(1)
    vr = v_read(0)
    sl = [[qk(0, s, 0), qc[5 * s:5 * s + 5]] for s in range(8)]
    sl[0][1] = [] + sl[0][1]
    slots_emit(P, sl)
    P.add(vr)
    P.add(qc[40:])
    P.add(valu("v_mov_b32", vL[0], 0), valu("v_mov_b32", vL[1], 0))
    mx = rowmax(0, vT[1], vT[2])
    fill = mx + [vneg("v_mul_f32_e64", vNM[0][0], vT[1], 1.0, negs=(0,))] + [valu("v_mov_b32", vNM[0][e], vNM[0][0]) for e in range(1, 16)]
    fill += [valu("v_add_f32", vS[0][e], vS[0][e], vNM[0][0]) for e in range(16)]
    kr = k_read(1)
    sl = [[qk(1, s, 0), fill[5 * s:5 * s + 5] + ([kr[s - 1]] if s >= 1 else [])] for s in range(8)]
    slots_emit(P, sl)
    P.add(fill[40:])
    for e in range(17):
        P.add(sm_ops(0, e))
    mx = rowmax(1, vT[1], vT[2])
    fill = mx + [vneg("v_mul_f32_e64", vNM[1][0], vT[1], 1.0, negs=(0,))] + [valu("v_mov_b32", vNM[1][e], vNM[1][0]) for e in range(1, 16)]
    fill += [valu("v_add_f32", vS[1][e], vS[1][e], vNM[1][0]) for e in range(16)]
    for e in range(6):
        fill += sm_ops(1, e)
    n = (len(fill) + 7) // 8
    sl = [[pv(0, i, first=True), fill[n * i:n * i + n]] for i in range(8)]
    slots_emit(P, sl)
    P.add(salu("s_mov_b32", sKV, 3 * 16384))
    stamp(P, cfg)
    attn_iter(P, cfg, 1)
    P.add(salu("s_mov_b32", sCNT, 3))
    for trip in range(3):
        P.loop_begin("attn", trip)
        P.add(label("L_attn"))
        for jj in range(8):
            attn_iter(P, cfg, 2 + 8 * trip + jj, True)
        P.add(salu("s_sub_u32", sCNT, sCNT, 1), scmp("s_cmp_lg_u32", sCNT, 0), branch("s_cbranch_scc1", "L_attn"))
        P.loop_end()
    for j in range(26, 32):
        attn_iter(P, cfg, j)
    for e in range(6, 14):
        P.add(sm_ops(1, e))
    sl = [[pv(1, i), sm_ops(1, 14 + i) if i < 3 else []] for i in range(8)]
    slots_emit(P, sl)
    stamp(P, cfg)


def normalize_store(P, cfg):
    P.add(label("L_norm"))
    inv = [vT[1], vT[2]]
    for qb in range(2):
        P.add(valu("v_mov_b32", vT[3], vL[qb]), valu("v_mov_b32", vT[4], vL[qb]), valu("v_permlane32_swap_b32", vT[3], vT[4]),
              valu("v_add_f32", vT[3], vT[3], vT[4]), valu("v_rcp_f32", inv[qb], vT[3]))
        P.add(valu("v_mov_b32", vT[5 + qb], vT[3]))
    P.add(salu("s_mov_b32", sT0, L_LIMIT))
    P.add(vcmp("v_cmp_nge_f32", sT0, vT[5]), salu("s_mov_b64", sEX, VCC), vcmp("v_cmp_nge_f32", sT0, vT[6]),
          salu("s_or_b64", sEX, sEX, VCC), salu("s_cselect_b32", sT0, 1, 0), salu("s_lshl_b32", sT1, sWAVE, 2))
    P.add(valu("v_mov_b32", vT[3], sT0), valu("v_mov_b32", vT[4], sT1))
    P.add(ds_write("ds_write_b32", vT[4], vT[3], FLAG))
    for qb in range(2):
        for db in range(4):
            acc = vACC[qb][db]
            for r8 in range(2):
                dst = vS[0].sub(4 * ((2 * db + r8) % 4), 4) if qb == 0 else vS[1].sub(4 * ((2 * db + r8) % 4), 4)
                for e in range(8):
                    P.add(valu("v_mul_f32", acc[8 * r8 + e], inv[qb], acc[8 * r8 + e]))
                for e in range(4):
                    P.add(valu("v_cvt_pk_bf16_f32", dst[e], acc[8 * r8 + 2 * e], acc[8 * r8 + 2 * e + 1]))
                P.add(buf_store(dst, vOST, sO, sQ1 if qb else 0, db * 1024 + r8 * 512, cfg.o_flags))
    P.add(valu("v_mov_b32", vT[4], 0))
    P.add(wait(lgkm=0), barrier())
    P.add(ds_read("ds_read_b128", vP[0].sub(0, 4), vT[4], FLAG))
    P.add(valu("v_or3_b32", vT[3], vP[0][0], vP[0][1], vP[0][2]), valu("v_or_b32", vT[3], vT[3], vP[0][3]),
          valu("v_readfirstlane_b32", sT0, vT[3]), salu("s_andn2_b32", sT0, sT0, sSEC))
    P.add(branch("s_cbranch_scc1", "L_slow"))


def slow_path(cfg):
    P = Prog(verbose=False)
    P.add(label("L_slow"))
    P.add(wait(vm=0, lgkm=0), nop(7))
    P.add(salu("s_mov_b32", sSEC, 1), salu("s_mov_b32", sKV, 0))
    for qb in range(2):
        P.add(valu("v_mov_b32", vL[qb], 0), valu("v_mov_b32", vM[qb], 0xff800000))
        for db in range(4):
            for e in range(16):
                P.add(valu("v_mov_b32", vACC[qb][db][e], 0))
    for trip in range(2):
        P.loop_begin("slow", trip)
        P.add(label("L_slow_loop"))
        P.add(wait(lgkm=0), barrier())
        T = 4 * trip
        P.add(k_dma(cfg, T, soff=True), v_dma(cfg, T, soff=True))
        P.add(wait(vm=0), barrier())
        for half in range(2):
            j = 2 * T + half
            P.add(k_read(j), v_read(j))
            for qb in range(2):
                for s in range(8):
                    P.add(qk(qb, s, 0))
            for qb in range(2):
                P.add(rowmax(qb, vT[1], vT[2]))
                P.add(valu("v_max_f32", vT[1], vT[1], vM[qb]), valu("v_sub_f32", vT[2], vM[qb], vT[1]), valu("v_exp_f32", vT[2], vT[2]),
                      valu("v_mov_b32", vM[qb], vT[1]), valu("v_mul_f32", vL[qb], vL[qb], vT[2]))
                for db in range(4):
                    for e in range(16):
                        P.add(valu("v_mul_f32", vACC[qb][db][e], vACC[qb][db][e], vT[2]))
                for e in range(16):
                    P.add(valu("v_sub_f32", vS[qb][e], vS[qb][e], vT[1]))
                for e in range(17):
                    P.add(sm_ops(qb, e))
                for i in range(8):
                    P.add(pv(qb, i))
        P.add(salu("s_add_u32", sKV, sKV, 16384), scmp("s_cmp_lt_u32", sKV, 262144), branch("s_cbranch_scc1", "L_slow_loop"))
        P.loop_end()
    P.add(wait(vm=0, lgkm=0), barrier(), nop(15), branch("s_branch", "L_norm"))
    return P.finish()


def write_stamps(P, cfg, slot_off):
    if not cfg.stamps:
        return
    n = nstamp[0]
    P.add(raw(f"s_memrealtime {S(98, 2)}", "salu"))
    P.add(wait(lgkm=0, vm=0))
    P.add(salu("s_add_u32", sDBG[0], sARG[14], slot_off), salu("s_addc_u32", sDBG[1], sARG[15], 0), salu("s_mov_b32", sDBG[2], 1 << 20), salu("s_mov_b32", sDBG[3], 0x20000))
    P.add(salu("s_lshl_b32", sT0, S(2), 2), salu("s_add_u32", sT0, sT0, sWAVE), salu("s_lshl_b32", sT0, sT0, 7))
    P.add(valu("v_mov_b32", vT[0], sT0))
    for i in range(n):
        P.add(valu("v_mov_b32", vT[1], sSTAMP[2 * i]), buf_store(vT[1], vT[0], sDBG, 0, 4 * i))
    P.add(valu("v_mov_b32", vT[1], S(100)), buf_store(vT[1], vT[0], sDBG, 0, 4 * 30))
    P.add(valu("v_mov_b32", vT[1], S(98)), buf_store(vT[1], vT[0], sDBG, 0, 4 * 31))


def kernel_A(cfg, name):
    nstamp[0] = 0
    P = Prog()
    if cfg.stamps:
        P.add(raw(f"s_memrealtime {S(100, 2)}", "salu"))
    entry(P, 256, "L_endA")
    stamp(P, cfg)
    setup_A(P)
    phase1(P, cfg)
    phase2(P, cfg)
    normalize_store(P, cfg)
    stamp(P, cfg)
    write_stamps(P, cfg, 64 << 20)
    P.add(label("L_endA"), raw("s_endpgm", "salu"))
    return P.finish() + slow_path(cfg)


bOLD = V(8); bWD = V(12, 4); bRD = V(16, 4); bRW = V(20); bRR = V(21); bOST = V(22)
bACC = [[V(32 + 16 * rt + 4 * t, 4) for t in range(4)] for rt in range(5)]
bWF = [[V(112 + 16 * p + 4 * t, 4) for t in range(4)] for p in range(2)]
OD = 6
bOF = [[A(20 * d + 4 * rt, 4) for rt in range(5)] for d in range(OD)]
sRT = S(56, 5)
sROW = S(61, 3)
WD = 6
NSL = 10


def kernel_B(cfg, name):
    nstamp[0] = 0
    P = Prog()
    if cfg.stamps:
        P.add(raw(f"s_memrealtime {S(100, 2)}", "salu"))
    entry(P, 240, "L_endB")
    stamp(P, cfg)
    l = vTID
    t0 = vT[2]; t1 = vT[3]; t2 = vT[4]; t3 = vT[5]; t4 = vT[6]
    sR3, sCT = S(54), S(55)
    P.add(salu("s_and_b32", sT0, S(2), 7), salu("s_lshr_b32", sT1, S(2), 3))
    P.add(salu("s_mul_i32", sT2, sT1, 52), salu("s_lshr_b32", sT2, sT2, 8))
    P.add(salu("s_mul_i32", sCT, sT2, 5), salu("s_sub_u32", sCT, sT1, sCT))
    P.add(salu("s_and_b32", sT1, sT0, 1), salu("s_mul_i32", sT1, sT1, 5), salu("s_add_u32", sCT, sCT, sT1))
    P.add(salu("s_lshr_b32", sT0, sT0, 1), salu("s_mul_i32", sT0, sT0, 6), salu("s_add_u32", sR3, sT0, sT2))
    for rt in range(5):
        P.add(salu("s_mov_b32", sRT[rt], rt * 131072))
    P.add(salu("s_mul_i32", sT2, sWAVE, 1024 * 1280), salu("s_mul_i32", sW4K, sWAVE, 40960))
    P.add(valu("v_lshrrev_b32", t0, 3, l), valu("v_mul_u32_u24", t0, 1280, t0), valu("v_add_u32", t0, sT2, t0),
          valu("v_bfe_u32", t1, l, 4, 1), valu("v_lshlrev_b32", t1, 1, t1), valu("v_and_b32", t2, 7, l), valu("v_xor_b32", t1, t1, t2))
    for i in range(4):
        P.add(valu("v_xor_b32", t2, 4 * (i & 1), t1), valu("v_lshl_add_u32", t2, t2, 4, t0), valu("v_add_u32", bWD[i], 9216 * i, t2))
    P.add(salu("s_lshl_b32", sT2, sWAVE, 15), valu("v_lshlrev_b32", t0, 4, l), valu("v_add_u32", bOLD, sT2, t0))
    P.add(salu("s_lshl_b32", sT0, sCT, 7), salu("s_sub_u32", sT1, 5242880, sT0))
    srd(P, sWO, sARG[8], sARG[9], sT0, sT1)
    P.add(salu("s_mul_i32", sT0, sR3, 5 * 131072))
    srd(P, sO, sARG[14], sARG[15], sT0, 5 * 131072)

    def wo_dma(k):
        out = [salu("s_add_u32", M0, sW4K, (k % NSL) * 4096), salu("s_mov_b32", sWOFF, k * 40960)]
        for i in range(4):
            out.append(dma(bWD[i], sWO, sWOFF, 1024 * i, region=(f"B{k % NSL}", False), tag=("WO", k)))
        return out

    def o_load(k):
        out = []
        if k % 4 == 0 and k > 0:
            out.append(valu("v_add_u32", bOLD, 4096, bOLD))
        for rt in range(5):
            out.append(buf_load(bOF[k % OD][rt], bOLD, sO, sRT[rt], (k % 4) * 1024, cfg.o_ld_flags))
        return out

    def wo_read(k):
        out = []
        for t in range(4):
            for h in range(2):
                out.append(ds_read("ds_read_b64_tr_b16", bWF[k & 1][t].sub(2 * h, 2), bRD[t], (k % NSL) * 4096 + h * 512,
                                   region=(f"B{k % NSL}", False), expect=("WO", k)))
        return out

    for k in range(WD):
        P.add(wo_dma(k), o_load(k))
        if k == 0:
            P.add(valu("v_lshrrev_b32", t0, 4, l), valu("v_bfe_u32", t1, l, 2, 2), valu("v_lshl_add_u32", t2, t0, 3, t1),
                  valu("v_lshlrev_b32", t2, 7, t2), valu("v_and_b32", t3, 3, l), valu("v_lshl_add_u32", t2, t3, 3, t2), valu("v_add_u32", t2, sW4K, t2),
                  valu("v_and_b32", t0, 1, t0), valu("v_lshlrev_b32", t0, 1, t0), valu("v_lshrrev_b32", t1, 1, t1), valu("v_or_b32", t0, t0, t1))
            for t in range(4):
                P.add(valu("v_xor_b32", t3, t, t0), valu("v_lshl_add_u32", bRD[t], t3, 5, t2))
            P.add(salu("s_mul_i32", sT2, sWAVE, 20480))
            P.add(valu("v_and_b32", t0, 15, l), valu("v_lshrrev_b32", t1, 4, l), valu("v_and_b32", t2, 7, l), valu("v_xor_b32", t1, t1, t2),
                  valu("v_lshlrev_b32", t0, 8, t0), valu("v_lshl_add_u32", t0, t1, 4, t0), valu("v_add_u32", bRW, sT2, t0))
            P.add(salu("s_lshl_b32", sT2, sWAVE, 2), valu("v_lshrrev_b32", t0, 4, l), valu("v_add_u32", t0, sT2, t0),
                  valu("v_and_b32", t1, 7, t0), valu("v_and_b32", t2, 15, l), valu("v_xor_b32", t1, t1, t2),
                  valu("v_lshlrev_b32", t3, 8, t0), valu("v_lshl_add_u32", bRR, t1, 4, t3),
                  valu("v_mul_u32_u24", t0, 1280, t0), valu("v_lshl_add_u32", bOST, t2, 3, t0))
            P.add(salu("s_mul_i32", sT0, sR3, 80 * 1280), salu("s_lshl_b32", sT1, sCT, 7), salu("s_add_u32", sT0, sT0, sT1))
            srd(P, sOUT, sARG[10], sARG[11], sT0, 79 * 1280 + 128)
    P.add(wait_tags(("WO", 0)))
    stamp(P, cfg)
    P.add(wo_read(0))
    for k in range(32):
        sl = [[None, []] for _ in range(20)]
        for rt in range(5):
            for t in range(4):
                sl[4 * rt + t][0] = mfma(bACC[rt][t], bWF[k & 1][t], bOF[k % OD][rt], 0 if k == 0 else bACC[rt][t], "16x16x32")
        if k + 1 < 32:
            sl[0][1].append(wait_tags(("WO", k + 1)))
            for i, r in enumerate(wo_read(k + 1)):
                sl[i][1].append(r)
        if k + WD < 32:
            g = wo_dma(k + WD)
            sl[8][1] += g[:2]
            for i in range(4):
                sl[9 + i][1].append(g[2 + i])
        if k >= 1 and k - 1 + OD < 32:
            g = o_load(k - 1 + OD)
            if len(g) == 6:
                sl[13][1].append(g.pop(0))
            for i in range(5):
                sl[14 + i][1].append(g[i])
        slots_emit(P, sl)
    stamp(P, cfg)
    P.add(wait(lgkm=0), barrier())
    for rt in range(5):
        for t in range(4):
            if t & 1:
                P.add(ds_write("ds_write_b128", t4, bACC[rt][t], rt * 4096 + (t >> 1) * 128))
            else:
                P.add(ds_write("ds_write_b128", bRW, bACC[rt][t], rt * 4096 + (t >> 1) * 128))
            if rt == 0 and t == 0:
                P.add(valu("v_xor_b32", t4, 64, bRW))
    P.add(wait(lgkm=0), barrier())
    for i in range(1, 4):
        P.add(salu("s_mov_b32", sROW[i - 1], i * 20480))
    P.add(salu("s_mov_b32", sT0, 4 * 20480))
    P.add(valu("v_add_u32", t3, 40960, bRR))
    for i in range(5):
        for p in range(4):
            P.add(ds_read("ds_read_b128", V(32 + 16 * i + 4 * p, 4), bRR if p < 2 else t3, (p & 1) * 20480 + i * 4096))
    for i in range(5):
        b = 32 + 16 * i
        for e in range(4):
            P.add(valu("v_add_f32", V(b + e), V(b + e), V(b + 4 + e)), valu("v_add_f32", V(b + 8 + e), V(b + 8 + e), V(b + 12 + e)))
        for e in range(4):
            P.add(valu("v_add_f32", V(b + e), V(b + e), V(b + 8 + e)))
        P.add(valu("v_cvt_pk_bf16_f32", V(b + 4), V(b), V(b + 1)), valu("v_cvt_pk_bf16_f32", V(b + 5), V(b + 2), V(b + 3)))
        P.add(buf_store(V(b + 4, 2), bOST, sOUT, 0 if i == 0 else (sROW[i - 1] if i < 4 else sT0)))
    stamp(P, cfg)
    write_stamps(P, cfg, (64 << 20) + (1 << 20))
    P.add(label("L_endB"), raw("s_endpgm", "salu"))
    return P.finish()


HEADER = """; Fused multi-head attention block: Q projection, softmax(Q K^T) V, output projection.
"""


def descriptor(name):
    return f""".amdhsa_kernel {name}
  .amdhsa_next_free_vgpr 512
  .amdhsa_next_free_sgpr 102
  .amdhsa_accum_offset 256
  .amdhsa_group_segment_fixed_size 0
  .amdhsa_kernarg_size 64
  .amdhsa_user_sgpr_count 2
  .amdhsa_user_sgpr_kernarg_segment_ptr 1
  .amdhsa_system_sgpr_workgroup_id_x 1
.end_amdhsa_kernel
"""


def build(cfg):
    a, b = KNAME, "oproj_kernel"
    s = HEADER
    s += f"; @launch kernel={a} grid=(256,1,1) block=(256,1,1) lds=163840\n"
    s += f"; @launch kernel={b} grid=(240,1,1) block=(256,1,1) lds=163840\n"
    s += '.amdgcn_target "amdgcn-amd-amdhsa--gfx950"\n.text\n'
    for n, f in ((a, kernel_A), (b, kernel_B)):
        s += f".globl {n}\n.p2align 8\n.type {n},@function\n{n}:\n" + f(cfg, n)
    s += ".fill 8192, 4, 0xbf800000\n"
    s += '.section .rodata,"a"\n.p2align 6\n' + descriptor(a) + ".p2align 6\n" + descriptor(b)
    return s


if __name__ == "__main__":
    cfg = Cfg()
    cfg.o_ld_flags = ""
    out = "k.s"
    for a in sys.argv[1:]:
        if a.startswith("-o"):
            out = a[2:]
        else:
            k, v = a.split("=")
            setattr(cfg, k, eval(v))
    open(out, "w").write(build(cfg))
    print("wrote", out)
```

```python
import sys, math
sys.path.insert(0, "dev")
from asmdsl import *

KNAME = "standalone__mha_block_cached__near_ridge_kernel"
CSCALE = math.log2(math.e) / math.sqrt(128.0)
L_LIMIT = float(2 ** 24)

KB, VB, EB = 0, 65536, 131072
WB = VB + 3 * 16384
XT = 3 * 16384
FLAG = 0


class Cfg:
    stamps = False
    kv_in_p1 = True
    o_flags = ""
    kv_flags = "nt"
    abl = ""


sX, sW, sK, sV, sO = S(4, 4), S(8, 4), S(12, 4), S(16, 4), S(20, 4)
sWO, sOUT, sDBG = S(24, 4), S(28, 4), S(32, 4)
sARG = S(36, 16)
sWAVE, sW4K, sB, sH = S(52), S(53), S(54), S(55)
sXROW = S(56, 8)
sKV, sWOFF, sCNT, sT0, sT1, sT2, sSEC, sQ1 = S(64), S(65), S(66), S(67), S(68), S(69), S(70), S(71)
sEX = S(72, 2)
sSTAMP = S(76, 24)

vTID = V(0)
vT = V(1, 7)
vKRD = V(8, 8)
vVRD = V(16, 4)
vKDMA = V(20, 4)
vVDMA = V(24)
vOST = V(25)
vL = V(26, 2)
vM = V(28, 2)
vWRD = V(30, 4)
vWDMA = V(34, 4)
vXLD = V(38)
vXWR = V(40, 2)
vXRD = V(42, 4)
vS = [V(48, 16), V(64, 16)]
vP = [V(80, 8), V(88, 8)]
vNM = [V(96, 16), V(112, 16)]
vACC = [[V(128 + 64 * qb + 16 * db, 16) for db in range(4)] for qb in range(2)]
aWF = [A(4 * i, 4) for i in range(16)]
aXF = [[A(64 + 16 * qb + 4 * s, 4) for s in range(4)] for qb in range(2)]
aXS = [[A(96 + 16 * u + 4 * i, 4) for i in range(4)] for u in range(6)]
aKF = [A(96 + 4 * i, 4) for i in range(8)]
aVF = [A(128 + 4 * i, 4) for i in range(8)]
aQ = [[A(192 + 32 * qb + 4 * s, 4) for s in range(8)] for qb in range(2)]


nstamp = [0]


def stamp(P, cfg):
    if not cfg.stamps:
        return
    i = nstamp[0]; nstamp[0] += 1
    op = "s_memrealtime" if cfg.stamps == 2 else "s_memtime"
    P.add(raw(f"{op} {sSTAMP.sub(2 * i, 2)}", "salu"))


def srd(P, s, base_lo, base_hi, off, size):
    P.add(salu("s_add_u32", s[0], base_lo, off), salu("s_addc_u32", s[1], base_hi, 0),
          salu("s_mov_b32", s[2], size), salu("s_mov_b32", s[3], 0x20000))


def entry(P, nwg, label_exit):
    P.add(scmp("s_cmp_ge_u32", S(2), nwg), branch("s_cbranch_scc1", label_exit))
    P.add(smem("s_load_dwordx8", sARG.sub(0, 8), S(0, 2), 0), smem("s_load_dwordx8", sARG.sub(8, 8), S(0, 2), 32))
    P.add(raw(f"s_getpc_b64 {sEX}", "salu", [], [sEX]))
    P.add(valu("v_lshlrev_b32", vT[0], 7, vTID))
    P.add(I(f"global_load_dword {vT[1]}, {vT[0]}, {sEX}", "vm_load", [vT[0], sEX], [vT[1]], tag="code"))
    P.add(valu("v_lshrrev_b32", vT[2], 6, vTID))
    P.add(valu("v_and_b32", vTID, 63, vTID))
    P.add(valu("v_readfirstlane_b32", sWAVE, vT[2]))


def setup_A(P):
    l = vTID
    t0, t1, t2, t3, t4, t5 = [vT[i] for i in range(1, 7)]
    t0 = vT[2]; t1 = vT[3]; t2 = vT[4]; t3 = vT[5]; t4 = vT[6]
    P.add(salu("s_and_b32", sT0, S(2), 7), salu("s_lshr_b32", sT1, S(2), 3))
    P.add(salu("s_and_b32", sB, sT0, 1), salu("s_lshl_b32", sB, sB, 2), salu("s_and_b32", sT2, sT1, 3), salu("s_add_u32", sB, sB, sT2))
    P.add(salu("s_lshr_b32", sH, sT0, 1), salu("s_lshl_b32", sH, sH, 3), salu("s_lshr_b32", sT2, sT1, 2), salu("s_add_u32", sH, sH, sT2))
    P.add(salu("s_lshl_b32", sW4K, sWAVE, 12))
    for i in range(8):
        P.add(salu("s_mov_b32", sXROW[i], i * 10240))
    P.add(valu("v_lshrrev_b32", t0, 4, l), valu("v_lshlrev_b32", t1, 2, t0), valu("v_and_b32", t2, 15, l), valu("v_xor_b32", t1, t1, t2),
          valu("v_lshlrev_b32", t1, 4, t1))
    P.add(salu("s_lshl_b32", sT2, sWAVE, 17))
    P.add(valu("v_lshl_add_u32", t3, t0, 13, t1), valu("v_add_u32", vWDMA[0], sT2, t3))
    for i in range(1, 4):
        P.add(valu("v_add_u32", vWDMA[i], i * (32768 - 1024), vWDMA[0]))
    P.add(valu("v_lshl_add_u32", t3, t0, 8, t1), valu("v_add_u32", vVDMA, sW4K, t3))
    P.add(salu("s_mul_i32", sT2, sWAVE, 64 * 1280))
    P.add(valu("v_lshrrev_b32", t3, 3, l), valu("v_mul_u32_u24", t4, 1280, t3), valu("v_and_b32", t1, 7, l),
          valu("v_lshl_add_u32", t4, t1, 4, t4), valu("v_add_u32", vXLD, sT2, t4))
    P.add(salu("s_mul_i32", sT0, sB, 307200))
    srd(P, sX, sARG[0], sARG[1], sT0, 307200)
    P.add(salu("s_lshl_b32", sT0, sH, 8), salu("s_sub_u32", sT1, 5242880, sT0))
    srd(P, sW, sARG[6], sARG[7], sT0, sT1)


def setup_A2(P):
    l = vTID
    t0 = vT[2]; t1 = vT[3]; t2 = vT[4]; t3 = vT[5]; t4 = vT[6]
    P.add(salu("s_lshl_b32", sT0, sB, 5), salu("s_add_u32", sT0, sT0, sH), salu("s_lshl_b32", sT0, sT0, 18))
    srd(P, sK, sARG[2], sARG[3], sT0, 262144)
    srd(P, sV, sARG[4], sARG[5], sT0, 262144)
    P.add(salu("s_mul_i32", sT0, sB, 15 * 32), salu("s_add_u32", sT0, sT0, sH), salu("s_lshl_b32", sT0, sT0, 12))
    srd(P, sO, sARG[14], sARG[15], sT0, 14 * 131072 + 4096)
    P.add(salu("s_mov_b32", sQ1, 262144), salu("s_mov_b32", sSEC, 0))
    P.add(valu("v_lshrrev_b32", t0, 4, l), valu("v_and_b32", t2, 15, l), valu("v_xor_b32", t1, t0, t2),
          valu("v_lshlrev_b32", t3, 8, t0), valu("v_add_u32", t3, sW4K, t3))
    for i in range(4):
        P.add(valu("v_xor_b32", t4, 4 * i, t1), valu("v_lshl_add_u32", vKDMA[i], t4, 4, t3))
    P.add(valu("v_lshrrev_b32", t3, 3, l), valu("v_lshlrev_b32", t3, 7, t3), valu("v_add_u32", t3, sW4K, t3), valu("v_add_u32", t3, XT, t3),
          valu("v_and_b32", t1, 7, l), valu("v_xor_b32", t1, t1, t0))
    for p in range(2):
        P.add(valu("v_xor_b32", t4, 4 * p, t1), valu("v_lshl_add_u32", vXWR[p], t4, 4, t3))
    P.add(valu("v_and_b32", t0, 31, l), valu("v_lshrrev_b32", t1, 5, l), valu("v_bfe_u32", t2, l, 1, 3), valu("v_xor_b32", t2, t2, t1),
          valu("v_lshlrev_b32", t3, 7, t0), valu("v_add_u32", t3, sW4K, t3), valu("v_add_u32", t3, XT, t3))
    for s in range(4):
        P.add(valu("v_xor_b32", t4, 2 * s, t2), valu("v_lshl_add_u32", vXRD[s], t4, 4, t3))
    P.add(valu("v_and_b32", t2, 15, l), valu("v_xor_b32", t2, t2, t1), valu("v_lshlrev_b32", t3, 8, t0))
    for s in range(8):
        P.add(valu("v_xor_b32", t4, 2 * s, t2), valu("v_lshl_add_u32", vKRD[s], t4, 4, t3))
    P.add(valu("v_bfe_u32", t2, l, 4, 1), valu("v_lshlrev_b32", t2, 17, t2), valu("v_and_b32", t3, 15, l), valu("v_lshl_add_u32", t3, t1, 4, t3),
          valu("v_lshl_add_u32", t2, t3, 4, t2), salu("s_lshl_b32", sT0, sWAVE, 19), valu("v_add_u32", vOST, sT0, t2))
    P.add(valu("v_bfe_u32", t0, l, 2, 2))
    P.add(valu("v_bfe_u32", t2, l, 4, 1), valu("v_lshlrev_b32", t2, 5, t2),
          valu("v_and_b32", t3, 1, l), valu("v_lshl_add_u32", t2, t3, 4, t2),
          valu("v_bfe_u32", t3, l, 1, 1), valu("v_lshl_add_u32", t2, t3, 3, t2),
          valu("v_lshl_add_u32", t2, t0, 8, t2))
    P.add(valu("v_lshl_add_u32", t3, t1, 10, t2), valu("v_add_u32", t3, VB, t3))
    P.add(valu("v_lshl_add_u32", t2, t1, 11, t2), valu("v_add_u32", t2, WB, t2))
    for db in range(4):
        P.add(valu("v_xor_b32", t4, db, t0), valu("v_lshl_add_u32", vVRD[db], t4, 6, t3), valu("v_lshl_add_u32", vWRD[db], t4, 6, t2))


def wslot(t): return (t + 2) % 3
def wregion(t): return ("V3", True) if wslot(t) == 0 else (f"E{wslot(t) - 1}", True)


def w_dma(t):
    out = [salu("s_add_u32", M0, sW4K, WB + wslot(t) * 16384), salu("s_mov_b32", sWOFF, t * 524288)]
    for i in range(4):
        out.append(dma(vWDMA[i], sW, sWOFF, 1024 * i, region=wregion(t), tag=("W", t)))
    return out


def x_load(n):
    t, qb = divmod(n, 2)
    return [buf_load(aXS[n % 6][i], vXLD, sX, sXROW[4 * qb + i], 128 * t, tag=("X", n)) for i in range(4)]


def x_write(n):
    return [ds_write("ds_write_b128", vXWR[i & 1], aXS[n % 6][i], 1024 * i, region=("K3", False), tag=("X", n)) for i in range(4)]


def x_read(n):
    qb = n & 1
    return [ds_read("ds_read_b128", aXF[qb][s], vXRD[s], 0, region=("K3", False), expect=("X", n)) for s in range(4)]


def w_read(t):
    out = []
    for i in range(16):
        s, db = divmod(i, 4)
        for h in range(2):
            out.append(ds_read("ds_read_b64_tr_b16", aWF[i].sub(2 * h, 2), vWRD[db], wslot(t) * 16384 + s * 4096 + h * 1024,
                               region=wregion(t), expect=("W", t)))
    return out


def k_dma(cfg, T, soff=None):
    out = [salu("s_add_u32", M0, sW4K, KB + (T & 3) * 16384)]
    if soff is None:
        out.append(salu("s_mov_b32", sKV, T * 16384))
    for i in range(4):
        out.append(dma(vKDMA[i], sK, sKV, 1024 * i, cfg.kv_flags, region=(f"K{T & 3}", True), tag=("K", T)))
    return out


def v_dma(cfg, T, soff=None):
    out = [salu("s_add_u32", M0, sW4K, VB + (T & 3) * 16384)]
    if soff is None:
        out.append(salu("s_mov_b32", sKV, T * 16384))
    for i in range(4):
        out.append(dma(vVDMA, sV, sKV, 1024 * i, cfg.kv_flags, region=(f"V{T & 3}", True), tag=("V", T)))
    return out


def k_read(j):
    T, half = divmod(j, 2)
    return [ds_read("ds_read_b128", aKF[s], vKRD[s], (T & 3) * 16384 + half * 8192, region=(f"K{T & 3}", True), expect=("K", T)) for s in range(8)]


def v_read(j):
    T, half = divmod(j, 2)
    out = []
    for i in range(8):
        ks, db = divmod(i, 4)
        for h in range(2):
            out.append(ds_read("ds_read_b64_tr_b16", aVF[i].sub(2 * h, 2), vVRD[db], (T & 3) * 16384 + half * 8192 + ks * 4096 + h * 2048,
                               region=(f"V{T & 3}", True), expect=("V", T)))
    return out


def q_convert(qb):
    out = []
    for db in range(4):
        acc = vACC[qb][db]
        for e in range(0, 16, 2):
            tmp = vT[(e // 2) % 4 + 1]
            out += [valu("v_mul_f32", acc[e], sT2, acc[e]), valu("v_mul_f32", acc[e + 1], sT2, acc[e + 1]),
                    valu("v_cvt_pk_bf16_f32", tmp, acc[e], acc[e + 1]),
                    valu("v_accvgpr_write_b32", aQ[qb][2 * db + e // 8][(e % 8) // 2], tmp)]
    return out


def phase1(P, cfg):
    P.add(w_dma(0), x_load(0), x_load(1))
    setup_A2(P)
    P.add(w_dma(1), x_load(2), x_load(3), w_dma(2), x_load(4), x_load(5))
    P.add(x_write(0), x_read(0))
    P.add(wait_tags(("W", 0)), barrier())
    stamp(P, cfg)
    wr = w_read(0)
    P.add(wr[:23])
    P.add(x_load(6))
    carry = [(32 + k, r) for k, r in enumerate(wr[23:31])] + [(40, wr[31])]
    kvq = []
    if cfg.kv_in_p1:
        groups = [k_dma(cfg, 0), v_dma(cfg, 0), k_dma(cfg, 1), v_dma(cfg, 1), k_dma(cfg, 2), v_dma(cfg, 2)]
        sched = {1: 0, 2: 1, 3: 2, 4: 3, 5: 4, 6: 5}
    else:
        groups = [k_dma(cfg, 0) + v_dma(cfg, 0), k_dma(cfg, 1) + v_dma(cfg, 1) + k_dma(cfg, 2) + v_dma(cfg, 2)]
        sched = {7: 0, 8: 1}
    NT = 10
    P.add(comment("P1 steps begin"))
    for t in range(NT):
        sl = [[None, []] for _ in range(32)]
        for qb in range(2):
            for i in range(16):
                s, db = divmod(i, 4)
                c = 0 if (t == 0 and s == 0) else vACC[qb][db]
                sl[16 * qb + i][0] = mfma(vACC[qb][db], aWF[i], aXF[qb][s], c)
        for k, w in enumerate(x_write(2 * t + 1)):
            sl[k][1].append(w)
        for k, r in enumerate(x_read(2 * t + 1)):
            sl[4 + k][1].append(r)
        for (pos, r) in carry:
            sl[pos - 32][1].append(r)
        carry = []
        if 2 * t + 1 + 6 < 2 * NT:
            for k, ld in enumerate(x_load(2 * t + 1 + 6)):
                sl[8 + k][1].append(ld)
        if t in sched:
            g = groups[sched[t]]
            pos = 12
            cnt = 0
            for ins in g:
                sl[min(pos, 15)][1].append(ins)
                if ins.kind == "dma":
                    cnt += 1
                    if cnt % max(1, (sum(1 for q in g if q.kind == "dma") // 4)) == 0:
                        pos += 1
        if t + 1 < NT:
            sl[16][1] += [wait_tags(("W", t + 1)), barrier()]
            for k, w in enumerate(x_write(2 * t + 2)):
                sl[16 + k][1].append(w)
            for k, r in enumerate(x_read(2 * t + 2)):
                sl[20 + k][1].append(r)
            wr = w_read(t + 1)
            cap = {p: (1 if (p <= 23 or 32 <= p <= 39) else 2) for p in range(17, 48)}
            p = 17
            for k, r in enumerate(wr):
                while cap[p] == 0 or p < 17 + k // 2:
                    p += 1
                cap[p] -= 1
                assert p <= 28 + k // 2
                if p < 32:
                    sl[p][1].append(r)
                else:
                    carry.append((p, r))
            if 2 * t + 2 + 6 < 2 * NT:
                for k, ld in enumerate(x_load(2 * t + 2 + 6)):
                    sl[24 + k][1].append(ld)
            g = None
            if t + 3 < NT:
                g = w_dma(t + 3)
            elif t == 7:
                g = v_dma(cfg, 3)
            if g:
                sl[27][1] += g[:2]
                for k, ins in enumerate(g[2:]):
                    sl[28 + k][1].append(ins)
        else:
            sl[16][1] += [wait_tags(("K", 0), ("V", 0)), barrier()]
            g = k_dma(cfg, 3)
            sl[17][1] += g[:2]
            for k, ins in enumerate(g[2:]):
                sl[18 + k][1].append(ins)
            for k, r in enumerate(k_read(0)):
                sl[22 + k][1].append(r)
            sl[15][1].append(salu("s_mov_b32", sT2, CSCALE))
            qc = q_convert(0)
            per = 4
            pos = 19
            while qc and pos < 32:
                sl[pos][1] += qc[:per]
                qc = qc[per:]
                pos += 1
            rest0 = qc
        if cfg.abl:
            for x in sl:
                x[1] = [q for q in x[1] if not (("w" in cfg.abl and q.kind == "ds_write") or ("l" in cfg.abl and q.kind == "vm_load")
                        or ("d" in cfg.abl and q.kind == "dma" and q.m["tag"][0] == "W") or ("r" in cfg.abl and q.kind == "ds_read" and q.m["expect"][0] == "W")
                        or ("x" in cfg.abl and q.kind == "ds_read" and q.m["expect"][0] == "X") or ("b" in cfg.abl and q.kind == "barrier" and t < 9)
                        or ("k" in cfg.abl and q.kind == "dma" and q.m["tag"][0] in "KV"))]
        slots_emit(P, sl)
    P.add(comment("P1 steps end"))
    P.add(rest0)
    stamp(P, cfg)


def sm_ops(qb, e):
    s = vS[qb]
    out = []
    if e < 16:
        out.append(valu("v_exp_f32", s[e], s[e]))
    if e >= 1:
        out.append(valu("v_add_f32", vL[qb], vL[qb], s[e - 1]))
        if (e - 1) & 1:
            out.append(valu("v_cvt_pk_bf16_f32", vP[qb][(e - 1) // 2], s[e - 2], s[e - 1]))
    return out


def qk(qb, s, c0):
    return mfma(vS[qb], aKF[s], aQ[qb][s], c0 if s == 0 else vS[qb])


def pv(qb, i, first=False):
    ks, db = divmod(i, 4)
    return mfma(vACC[qb][db], aVF[i], vP[qb].sub(4 * ks, 4), 0 if (first and ks == 0) else vACC[qb][db])


def rowmax(qb, dst, tmp):
    s = vS[qb]
    out = [valu("v_max3_f32", dst, s[0], s[1], s[2])]
    for e in range(3, 15, 2):
        out.append(valu("v_max3_f32", dst, dst, s[e], s[e + 1]))
    out.append(valu("v_max_f32", dst, dst, s[15]))
    out += [valu("v_mov_b32", tmp, dst), valu("v_permlane32_swap_b32", dst, tmp), valu("v_max_f32", dst, dst, tmp)]
    return out


V_POS = [9 + (2 * k) // 3 for k in range(16)]


def attn_iter(P, cfg, j, in_loop=False):
    T = j // 2
    sl = [[None, []] for _ in range(32)]
    for s in range(8):
        sl[s][0] = qk(0, s, vNM[0])
        sl[8 + s][0] = pv(1, s, first=(j == 1))
        sl[16 + s][0] = qk(1, s, vNM[1])
        sl[24 + s][0] = pv(0, s)
    for e in range(6, 17):
        sl[e - 6][1] += sm_ops(1, e)
    for e in range(17):
        sl[10 + e][1] += sm_ops(0, e)
    for e in range(6):
        sl[26 + e][1] += sm_ops(1, e)
    sl[0][1].append(k_read(j)[7])
    for k, r in enumerate(v_read(j)):
        sl[V_POS[k]][1].append(r)
    if j & 1:
        if T + 1 < 16:
            sl[24][1] += [wait_tags(("K", T + 1), ("V", T + 1), lgkm=0), barrier()]
    else:
        Tn = T + 3
        if Tn < 16:
            sl[0][1].append(salu("s_add_u32", sKV, sKV, 16384))
            g = k_dma(cfg, Tn, soff=True)
            sl[1][1].insert(0, g[0])
            for k in range(4):
                sl[1 + k][1].append(g[1 + k])
            g = v_dma(cfg, Tn, soff=True)
            sl[5][1].insert(0, g[0])
            for k in range(4):
                sl[5 + k][1].append(g[1 + k])
    if j + 1 < 32:
        for k, r in enumerate(k_read(j + 1)[:7]):
            sl[25 + k][1].append(r)
    slots_emit(P, sl)


def phase2(P, cfg):
    qc = q_convert(1)
    vr = v_read(0)
    sl = [[qk(0, s, 0), qc[5 * s:5 * s + 5]] for s in range(8)]
    sl[0][1] = [] + sl[0][1]
    slots_emit(P, sl)
    P.add(vr)
    P.add(qc[40:])
    P.add(valu("v_mov_b32", vL[0], 0), valu("v_mov_b32", vL[1], 0))
    mx = rowmax(0, vT[1], vT[2])
    fill = mx + [vneg("v_mul_f32_e64", vNM[0][0], vT[1], 1.0, negs=(0,))] + [valu("v_mov_b32", vNM[0][e], vNM[0][0]) for e in range(1, 16)]
    fill += [valu("v_add_f32", vS[0][e], vS[0][e], vNM[0][0]) for e in range(16)]
    kr = k_read(1)
    sl = [[qk(1, s, 0), fill[5 * s:5 * s + 5] + ([kr[s - 1]] if s >= 1 else [])] for s in range(8)]
    slots_emit(P, sl)
    P.add(fill[40:])
    for e in range(17):
        P.add(sm_ops(0, e))
    mx = rowmax(1, vT[1], vT[2])
    fill = mx + [vneg("v_mul_f32_e64", vNM[1][0], vT[1], 1.0, negs=(0,))] + [valu("v_mov_b32", vNM[1][e], vNM[1][0]) for e in range(1, 16)]
    fill += [valu("v_add_f32", vS[1][e], vS[1][e], vNM[1][0]) for e in range(16)]
    for e in range(6):
        fill += sm_ops(1, e)
    n = (len(fill) + 7) // 8
    sl = [[pv(0, i, first=True), fill[n * i:n * i + n]] for i in range(8)]
    slots_emit(P, sl)
    P.add(salu("s_mov_b32", sKV, 3 * 16384))
    stamp(P, cfg)
    attn_iter(P, cfg, 1)
    P.add(salu("s_mov_b32", sCNT, 3))
    for trip in range(3):
        P.loop_begin("attn", trip)
        P.add(label("L_attn"))
        for jj in range(8):
            attn_iter(P, cfg, 2 + 8 * trip + jj, True)
        P.add(salu("s_sub_u32", sCNT, sCNT, 1), scmp("s_cmp_lg_u32", sCNT, 0), branch("s_cbranch_scc1", "L_attn"))
        P.loop_end()
    for j in range(26, 32):
        attn_iter(P, cfg, j)
    for e in range(6, 14):
        P.add(sm_ops(1, e))
    sl = [[pv(1, i), sm_ops(1, 14 + i) if i < 3 else []] for i in range(8)]
    slots_emit(P, sl)
    stamp(P, cfg)


def normalize_store(P, cfg):
    P.add(label("L_norm"))
    inv = [vT[1], vT[2]]
    for qb in range(2):
        P.add(valu("v_mov_b32", vT[3], vL[qb]), valu("v_mov_b32", vT[4], vL[qb]), valu("v_permlane32_swap_b32", vT[3], vT[4]),
              valu("v_add_f32", vT[3], vT[3], vT[4]), valu("v_rcp_f32", inv[qb], vT[3]))
        P.add(valu("v_mov_b32", vT[5 + qb], vT[3]))
    P.add(salu("s_mov_b32", sT0, L_LIMIT))
    P.add(vcmp("v_cmp_nge_f32", sT0, vT[5]), salu("s_mov_b64", sEX, VCC), vcmp("v_cmp_nge_f32", sT0, vT[6]),
          salu("s_or_b64", sEX, sEX, VCC), salu("s_cselect_b32", sT0, 1, 0), salu("s_lshl_b32", sT1, sWAVE, 2))
    P.add(valu("v_mov_b32", vT[3], sT0), valu("v_mov_b32", vT[4], sT1))
    P.add(ds_write("ds_write_b32", vT[4], vT[3], FLAG))
    for qb in range(2):
        for db in range(4):
            acc = vACC[qb][db]
            for r8 in range(2):
                dst = vS[0].sub(4 * ((2 * db + r8) % 4), 4) if qb == 0 else vS[1].sub(4 * ((2 * db + r8) % 4), 4)
                for e in range(8):
                    P.add(valu("v_mul_f32", acc[8 * r8 + e], inv[qb], acc[8 * r8 + e]))
                for e in range(4):
                    P.add(valu("v_cvt_pk_bf16_f32", dst[e], acc[8 * r8 + 2 * e], acc[8 * r8 + 2 * e + 1]))
                P.add(buf_store(dst, vOST, sO, sQ1 if qb else 0, db * 1024 + r8 * 512, cfg.o_flags))
    P.add(valu("v_mov_b32", vT[4], 0))
    P.add(wait(lgkm=0), barrier())
    P.add(ds_read("ds_read_b128", vP[0].sub(0, 4), vT[4], FLAG))
    P.add(valu("v_or3_b32", vT[3], vP[0][0], vP[0][1], vP[0][2]), valu("v_or_b32", vT[3], vT[3], vP[0][3]),
          valu("v_readfirstlane_b32", sT0, vT[3]), salu("s_andn2_b32", sT0, sT0, sSEC))
    P.add(branch("s_cbranch_scc1", "L_slow"))


def slow_path(cfg):
    P = Prog(verbose=False)
    P.add(label("L_slow"))
    P.add(wait(vm=0, lgkm=0), nop(7))
    P.add(salu("s_mov_b32", sSEC, 1), salu("s_mov_b32", sKV, 0))
    for qb in range(2):
        P.add(valu("v_mov_b32", vL[qb], 0), valu("v_mov_b32", vM[qb], 0xff800000))
        for db in range(4):
            for e in range(16):
                P.add(valu("v_mov_b32", vACC[qb][db][e], 0))
    for trip in range(2):
        P.loop_begin("slow", trip)
        P.add(label("L_slow_loop"))
        P.add(wait(lgkm=0), barrier())
        T = 4 * trip
        P.add(k_dma(cfg, T, soff=True), v_dma(cfg, T, soff=True))
        P.add(wait(vm=0), barrier())
        for half in range(2):
            j = 2 * T + half
            P.add(k_read(j), v_read(j))
            for qb in range(2):
                for s in range(8):
                    P.add(qk(qb, s, 0))
            for qb in range(2):
                P.add(rowmax(qb, vT[1], vT[2]))
                P.add(valu("v_max_f32", vT[1], vT[1], vM[qb]), valu("v_sub_f32", vT[2], vM[qb], vT[1]), valu("v_exp_f32", vT[2], vT[2]),
                      valu("v_mov_b32", vM[qb], vT[1]), valu("v_mul_f32", vL[qb], vL[qb], vT[2]))
                for db in range(4):
                    for e in range(16):
                        P.add(valu("v_mul_f32", vACC[qb][db][e], vACC[qb][db][e], vT[2]))
                for e in range(16):
                    P.add(valu("v_sub_f32", vS[qb][e], vS[qb][e], vT[1]))
                for e in range(17):
                    P.add(sm_ops(qb, e))
                for i in range(8):
                    P.add(pv(qb, i))
        P.add(salu("s_add_u32", sKV, sKV, 16384), scmp("s_cmp_lt_u32", sKV, 262144), branch("s_cbranch_scc1", "L_slow_loop"))
        P.loop_end()
    P.add(wait(vm=0, lgkm=0), barrier(), nop(15), branch("s_branch", "L_norm"))
    return P.finish()


def write_stamps(P, cfg, slot_off):
    if not cfg.stamps:
        return
    n = nstamp[0]
    P.add(raw(f"s_memrealtime {S(98, 2)}", "salu"))
    P.add(wait(lgkm=0, vm=0))
    P.add(salu("s_add_u32", sDBG[0], sARG[14], slot_off), salu("s_addc_u32", sDBG[1], sARG[15], 0), salu("s_mov_b32", sDBG[2], 1 << 20), salu("s_mov_b32", sDBG[3], 0x20000))
    P.add(salu("s_lshl_b32", sT0, S(2), 2), salu("s_add_u32", sT0, sT0, sWAVE), salu("s_lshl_b32", sT0, sT0, 7))
    P.add(valu("v_mov_b32", vT[0], sT0))
    for i in range(n):
        P.add(valu("v_mov_b32", vT[1], sSTAMP[2 * i]), buf_store(vT[1], vT[0], sDBG, 0, 4 * i))
    P.add(valu("v_mov_b32", vT[1], S(100)), buf_store(vT[1], vT[0], sDBG, 0, 4 * 30))
    P.add(valu("v_mov_b32", vT[1], S(98)), buf_store(vT[1], vT[0], sDBG, 0, 4 * 31))


def kernel_A(cfg, name):
    nstamp[0] = 0
    P = Prog()
    P.nocheck = bool(cfg.abl)
    if cfg.stamps:
        P.add(raw(f"s_memrealtime {S(100, 2)}", "salu"))
    entry(P, 256, "L_endA")
    stamp(P, cfg)
    setup_A(P)
    phase1(P, cfg)
    phase2(P, cfg)
    normalize_store(P, cfg)
    stamp(P, cfg)
    write_stamps(P, cfg, 64 << 20)
    P.add(label("L_endA"), raw("s_endpgm", "salu"))
    return P.finish() + slow_path(cfg)


bOLD = V(8); bWD = V(12, 4); bRD = V(16, 4); bRW = V(20); bRR = V(21); bOST = V(22)
bACC = [[V(32 + 16 * rt + 4 * t, 4) for t in range(4)] for rt in range(5)]
bWF = [[V(112 + 16 * p + 4 * t, 4) for t in range(4)] for p in range(2)]
OD = 6
bOF = [[A(20 * d + 4 * rt, 4) for rt in range(5)] for d in range(OD)]
sRT = S(56, 5)
sROW = S(61, 3)
WD = 6
NSL = 10


def kernel_B(cfg, name):
    nstamp[0] = 0
    P = Prog()
    if cfg.stamps:
        P.add(raw(f"s_memrealtime {S(100, 2)}", "salu"))
    entry(P, 240, "L_endB")
    stamp(P, cfg)
    l = vTID
    t0 = vT[2]; t1 = vT[3]; t2 = vT[4]; t3 = vT[5]; t4 = vT[6]
    sR3, sCT = S(54), S(55)
    P.add(salu("s_and_b32", sT0, S(2), 7), salu("s_lshr_b32", sT1, S(2), 3))
    P.add(salu("s_mul_i32", sT2, sT1, 52), salu("s_lshr_b32", sT2, sT2, 8))
    P.add(salu("s_mul_i32", sCT, sT2, 5), salu("s_sub_u32", sCT, sT1, sCT))
    P.add(salu("s_and_b32", sT1, sT0, 1), salu("s_mul_i32", sT1, sT1, 5), salu("s_add_u32", sCT, sCT, sT1))
    P.add(salu("s_lshr_b32", sT0, sT0, 1), salu("s_mul_i32", sT0, sT0, 6), salu("s_add_u32", sR3, sT0, sT2))
    for rt in range(5):
        P.add(salu("s_mov_b32", sRT[rt], rt * 131072))
    P.add(salu("s_mul_i32", sT2, sWAVE, 1024 * 1280), salu("s_mul_i32", sW4K, sWAVE, 40960))
    P.add(valu("v_lshrrev_b32", t0, 3, l), valu("v_mul_u32_u24", t0, 1280, t0), valu("v_add_u32", t0, sT2, t0),
          valu("v_bfe_u32", t1, l, 4, 1), valu("v_lshlrev_b32", t1, 1, t1), valu("v_and_b32", t2, 7, l), valu("v_xor_b32", t1, t1, t2))
    for i in range(4):
        P.add(valu("v_xor_b32", t2, 4 * (i & 1), t1), valu("v_lshl_add_u32", t2, t2, 4, t0), valu("v_add_u32", bWD[i], 9216 * i, t2))
    P.add(salu("s_lshl_b32", sT2, sWAVE, 15), valu("v_lshlrev_b32", t0, 4, l), valu("v_add_u32", bOLD, sT2, t0))
    P.add(salu("s_lshl_b32", sT0, sCT, 7), salu("s_sub_u32", sT1, 5242880, sT0))
    srd(P, sWO, sARG[8], sARG[9], sT0, sT1)
    P.add(salu("s_mul_i32", sT0, sR3, 5 * 131072))
    srd(P, sO, sARG[14], sARG[15], sT0, 5 * 131072)

    def wo_dma(k):
        out = [salu("s_add_u32", M0, sW4K, (k % NSL) * 4096), salu("s_mov_b32", sWOFF, k * 40960)]
        for i in range(4):
            out.append(dma(bWD[i], sWO, sWOFF, 1024 * i, region=(f"B{k % NSL}", False), tag=("WO", k)))
        return out

    def o_load(k):
        out = []
        if k % 4 == 0 and k > 0:
            out.append(valu("v_add_u32", bOLD, 4096, bOLD))
        for rt in range(5):
            out.append(buf_load(bOF[k % OD][rt], bOLD, sO, sRT[rt], (k % 4) * 1024, cfg.o_ld_flags))
        return out

    def wo_read(k):
        out = []
        for t in range(4):
            for h in range(2):
                out.append(ds_read("ds_read_b64_tr_b16", bWF[k & 1][t].sub(2 * h, 2), bRD[t], (k % NSL) * 4096 + h * 512,
                                   region=(f"B{k % NSL}", False), expect=("WO", k)))
        return out

    for k in range(WD):
        P.add(wo_dma(k), o_load(k))
        if k == 0:
            P.add(valu("v_lshrrev_b32", t0, 4, l), valu("v_bfe_u32", t1, l, 2, 2), valu("v_lshl_add_u32", t2, t0, 3, t1),
                  valu("v_lshlrev_b32", t2, 7, t2), valu("v_and_b32", t3, 3, l), valu("v_lshl_add_u32", t2, t3, 3, t2), valu("v_add_u32", t2, sW4K, t2),
                  valu("v_and_b32", t0, 1, t0), valu("v_lshlrev_b32", t0, 1, t0), valu("v_lshrrev_b32", t1, 1, t1), valu("v_or_b32", t0, t0, t1))
            for t in range(4):
                P.add(valu("v_xor_b32", t3, t, t0), valu("v_lshl_add_u32", bRD[t], t3, 5, t2))
            P.add(salu("s_mul_i32", sT2, sWAVE, 20480))
            P.add(valu("v_and_b32", t0, 15, l), valu("v_lshrrev_b32", t1, 4, l), valu("v_and_b32", t2, 7, l), valu("v_xor_b32", t1, t1, t2),
                  valu("v_lshlrev_b32", t0, 8, t0), valu("v_lshl_add_u32", t0, t1, 4, t0), valu("v_add_u32", bRW, sT2, t0))
            P.add(salu("s_lshl_b32", sT2, sWAVE, 2), valu("v_lshrrev_b32", t0, 4, l), valu("v_add_u32", t0, sT2, t0),
                  valu("v_and_b32", t1, 7, t0), valu("v_and_b32", t2, 15, l), valu("v_xor_b32", t1, t1, t2),
                  valu("v_lshlrev_b32", t3, 8, t0), valu("v_lshl_add_u32", bRR, t1, 4, t3),
                  valu("v_mul_u32_u24", t0, 1280, t0), valu("v_lshl_add_u32", bOST, t2, 3, t0))
            P.add(salu("s_mul_i32", sT0, sR3, 80 * 1280), salu("s_lshl_b32", sT1, sCT, 7), salu("s_add_u32", sT0, sT0, sT1))
            srd(P, sOUT, sARG[10], sARG[11], sT0, 79 * 1280 + 128)
    P.add(wait_tags(("WO", 0)))
    stamp(P, cfg)
    P.add(wo_read(0))
    for k in range(32):
        sl = [[None, []] for _ in range(20)]
        for rt in range(5):
            for t in range(4):
                sl[4 * rt + t][0] = mfma(bACC[rt][t], bWF[k & 1][t], bOF[k % OD][rt], 0 if k == 0 else bACC[rt][t], "16x16x32")
        if k + 1 < 32:
            sl[0][1].append(wait_tags(("WO", k + 1)))
            for i, r in enumerate(wo_read(k + 1)):
                sl[i][1].append(r)
        if k + WD < 32:
            g = wo_dma(k + WD)
            sl[8][1] += g[:2]
            for i in range(4):
                sl[9 + i][1].append(g[2 + i])
        if k >= 1 and k - 1 + OD < 32:
            g = o_load(k - 1 + OD)
            if len(g) == 6:
                sl[13][1].append(g.pop(0))
            for i in range(5):
                sl[14 + i][1].append(g[i])
        slots_emit(P, sl)
    stamp(P, cfg)
    P.add(wait(lgkm=0), barrier())
    for rt in range(5):
        for t in range(4):
            if t & 1:
                P.add(ds_write("ds_write_b128", t4, bACC[rt][t], rt * 4096 + (t >> 1) * 128))
            else:
                P.add(ds_write("ds_write_b128", bRW, bACC[rt][t], rt * 4096 + (t >> 1) * 128))
            if rt == 0 and t == 0:
                P.add(valu("v_xor_b32", t4, 64, bRW))
    P.add(wait(lgkm=0), barrier())
    for i in range(1, 4):
        P.add(salu("s_mov_b32", sROW[i - 1], i * 20480))
    P.add(salu("s_mov_b32", sT0, 4 * 20480))
    P.add(valu("v_add_u32", t3, 40960, bRR))
    for i in range(5):
        for p in range(4):
            P.add(ds_read("ds_read_b128", V(32 + 16 * i + 4 * p, 4), bRR if p < 2 else t3, (p & 1) * 20480 + i * 4096))
    for i in range(5):
        b = 32 + 16 * i
        for e in range(4):
            P.add(valu("v_add_f32", V(b + e), V(b + e), V(b + 4 + e)), valu("v_add_f32", V(b + 8 + e), V(b + 8 + e), V(b + 12 + e)))
        for e in range(4):
            P.add(valu("v_add_f32", V(b + e), V(b + e), V(b + 8 + e)))
        P.add(valu("v_cvt_pk_bf16_f32", V(b + 4), V(b), V(b + 1)), valu("v_cvt_pk_bf16_f32", V(b + 5), V(b + 2), V(b + 3)))
        P.add(buf_store(V(b + 4, 2), bOST, sOUT, 0 if i == 0 else (sROW[i - 1] if i < 4 else sT0)))
    stamp(P, cfg)
    write_stamps(P, cfg, (64 << 20) + (1 << 20))
    P.add(label("L_endB"), raw("s_endpgm", "salu"))
    return P.finish()


HEADER = """; Fused multi-head attention block: Q projection, softmax(Q K^T) V, output projection.
"""


def descriptor(name):
    return f""".amdhsa_kernel {name}
  .amdhsa_next_free_vgpr 512
  .amdhsa_next_free_sgpr 102
  .amdhsa_accum_offset 256
  .amdhsa_group_segment_fixed_size 0
  .amdhsa_kernarg_size 64
  .amdhsa_user_sgpr_count 2
  .amdhsa_user_sgpr_kernarg_segment_ptr 1
  .amdhsa_system_sgpr_workgroup_id_x 1
.end_amdhsa_kernel
"""


def build(cfg):
    a, b = KNAME, "oproj_kernel"
    s = HEADER
    s += f"; @launch kernel={a} grid=(256,1,1) block=(256,1,1) lds=163840\n"
    s += f"; @launch kernel={b} grid=(240,1,1) block=(256,1,1) lds=163840\n"
    s += '.amdgcn_target "amdgcn-amd-amdhsa--gfx950"\n.text\n'
    for n, f in ((a, kernel_A), (b, kernel_B)):
        s += f".globl {n}\n.p2align 8\n.type {n},@function\n{n}:\n" + f(cfg, n)
    s += ".fill 8192, 4, 0xbf800000\n"
    s += '.section .rodata,"a"\n.p2align 6\n' + descriptor(a) + ".p2align 6\n" + descriptor(b)
    return s


if __name__ == "__main__":
    cfg = Cfg()
    cfg.o_ld_flags = ""
    out = "k.s"
    for a in sys.argv[1:]:
        if a.startswith("-o"):
            out = a[2:]
        else:
            k, v = a.split("=")
            setattr(cfg, k, eval(v))
    open(out, "w").write(build(cfg))
    print("wrote", out)
```
